```python
import torch

def _softmax(x, axis=-1):
    return torch.softmax(x, dim=axis)
def _gelu(x):
    return torch.nn.functional.gelu(x, approximate="tanh")
def _silu(x):
    return torch.nn.functional.silu(x)
def _sigmoid(x):
    return torch.sigmoid(x)
def _layernorm(x, axis=-1, eps=1e-5):
    m = x.mean(dim=axis, keepdim=True)
    v = x.var(dim=axis, keepdim=True, unbiased=False)
    return (x - m) / torch.sqrt(v + eps)
def _scatter_add(tgt, idx, src, axis=0):
    return tgt.clone().index_add_(axis, idx, src)
def _segment_sum(src, seg, n):
    out = torch.zeros((n,) + src.shape[1:], dtype=src.dtype)
    return out.index_add_(0, seg, src)
def _pad(x, pw):
    flat = tuple(v for pair in reversed(pw) for v in pair)
    return torch.nn.functional.pad(x, flat)

kernel_name = 'recurrent_scan__mha_block_cached__glu_gated_geglu__prompt'

def setup_inputs():

    _w = (lambda a: (lambda t: t.to(torch.bfloat16) if t.is_floating_point() else t)(torch.as_tensor(a)))
    def _A_setup():
        B, Sq, D = 1, 2048, 512
        H, Sk, Dh = 32, 2048, 128
        return {
            "x": _w((lambda *s: torch.randn(*s, dtype=torch.bfloat16) * 0.05)(B, Sq, D)),
            "k_cache": _w((lambda *s: torch.randn(*s, dtype=torch.bfloat16) * 3.2)(B, H, Sk, Dh)),
            "v_cache": _w((lambda *s: torch.randn(*s, dtype=torch.bfloat16) * 3.2)(B, H, Sk, Dh)),
            "wq": _w((lambda *s: torch.randn(*s, dtype=torch.bfloat16) * 3.2)(D, H * Dh) * (D ** -0.5)),
            "wo": _w((lambda *s: torch.randn(*s, dtype=torch.bfloat16) * 3.2)(H * Dh, D) * ((H * Dh) ** -0.5)),
        }
    _A_in = _A_setup()

    def _B_setup():
        B, S, Dm, Df = 1, 2048, 512, 1792
        return {
            "x": _w((lambda *s: torch.randn(*s, dtype=torch.bfloat16) * 0.05)(B, S, Dm)),
            "w_gate": _w((lambda *s: torch.randn(*s, dtype=torch.bfloat16) * 0.4)(Dm, Df) * (Dm ** -0.5)),
            "w_up": _w((lambda *s: torch.randn(*s, dtype=torch.bfloat16) * 0.4)(Dm, Df) * (Dm ** -0.5)),
            "w_down": _w((lambda *s: torch.randn(*s, dtype=torch.bfloat16) * 0.4)(Df, Dm) * (Df ** -0.5)),
        }
    _B_in = _B_setup()

    return {
        "A_x": _A_in["x"],
        "A_k_cache": _A_in["k_cache"],
        "A_v_cache": _A_in["v_cache"],
        "A_wq": _A_in["wq"],
        "A_wo": _A_in["wo"],
        "B_x": _B_in["x"],
        "B_w_gate": _B_in["w_gate"],
        "B_w_up": _B_in["w_up"],
        "B_w_down": _B_in["w_down"],
    }

def reference(A_x, A_k_cache, A_v_cache, A_wq, A_wo, B_x, B_w_gate, B_w_up, B_w_down):
    def _A_ref(x, k_cache, v_cache, wq, wo):
        B, Sq, D = x.shape
        H, Dh = 32, 128
        q = (lambda x, *d: x.permute(*d))((x @ wq).reshape(B, Sq, H, Dh), 0, 2, 1, 3)
        scores = torch.einsum("bhqd,bhkd->bhqk", q, k_cache) * (Dh ** -0.5)
        p = _softmax(scores, axis=-1)
        o = torch.einsum("bhqk,bhkd->bhqd", p, v_cache)
        return (lambda x, *d: x.permute(*d))(o, 0, 2, 1, 3).reshape(B, Sq, H * Dh) @ wo

    def _B_ref(x, w_gate, w_up, w_down):
        g = torch.einsum("bsd,df->bsf", x, w_gate)
        u = torch.einsum("bsd,df->bsf", x, w_up)
        h = _gelu(g) * u
        return torch.einsum("bsf,fd->bsd", h, w_down)

    x = A_x
    xn = _layernorm(x, axis=-1)
    s = _A_ref(xn, A_k_cache, A_v_cache, A_wq, A_wo)
    g = _silu(_B_ref(xn, B_w_gate, B_w_up, B_w_down))
    return x + s * g
```

```python
import sys

NAME = "recurrent_scan__mha_block_cached__glu_gated_geglu__prompt"

WS_XN = 0
WS_Q = 4 << 20
WS_H = 20 << 20
WS_O = 32 << 20
DEBUG_K3 = False

HEADER = """; Kernarg layout for this problem (96 bytes, ptrs only, base s[0:1]):
"""


class Asm:
    def __init__(self):
        self.lines = []

    def __call__(self, s):
        self.lines.append("    " + s)

    def label(self, l):
        self.lines.append(l + ":")

    def raw(self, s):
        self.lines.append(s)

    def text(self):
        return "\n".join(self.lines) + "\n"


def kernel_begin(a, name):
    a.raw(".globl %s" % name)
    a.raw(".p2align 8")
    a.raw(".type %s,@function" % name)
    a.label(name)


def kernel_desc(name, nvgpr, nagpr, nsgpr=102):
    acc_off = (nvgpr + 3) // 4 * 4
    total = acc_off + nagpr if nagpr else nvgpr
    return """.amdhsa_kernel %s
  .amdhsa_next_free_vgpr %d
  .amdhsa_next_free_sgpr %d
  .amdhsa_accum_offset %d
  .amdhsa_group_segment_fixed_size 0
  .amdhsa_kernarg_size 96
  .amdhsa_user_sgpr_count 2
  .amdhsa_user_sgpr_kernarg_segment_ptr 1
  .amdhsa_system_sgpr_workgroup_id_x 1
.end_amdhsa_kernel
""" % (name, total, nsgpr, acc_off)


def srd(a, d, lo, hi, nbytes):
    a("s_mov_b32 s%d, s%d" % (d, lo))
    a("s_and_b32 s%d, s%d, 0xffff" % (d + 1, hi))
    a("s_mov_b32 s%d, 0x%x" % (d + 2, nbytes))
    a("s_mov_b32 s%d, 0x00020000" % (d + 3))


def add64(a, dlo, lo, hi, imm):
    a("s_add_u32 s%d, s%d, 0x%x" % (dlo, lo, imm))
    a("s_addc_u32 s%d, s%d, 0" % (dlo + 1, hi))


def bf16r(a, dst, src, tmp=None):
    a("v_cvt_pk_bf16_f32 v%d, v%d, v%d" % (dst, src, src))
    a("v_lshlrev_b32 v%d, 16, v%d" % (dst, dst))


def wave_allreduce_add(a, v, t):
    for off in (0x041F, 0x081F, 0x101F, 0x201F, 0x401F):
        a("ds_swizzle_b32 v%d, v%d offset:0x%04X" % (t, v, off))
        a("s_waitcnt lgkmcnt(0)")
        a("v_add_f32 v%d, v%d, v%d" % (v, v, t))
    a("v_mov_b32 v%d, v%d" % (t, v))
    a("s_nop 1")
    a("v_permlane32_swap_b32 v%d, v%d" % (v, t))
    a("s_nop 1")
    a("v_add_f32 v%d, v%d, v%d" % (v, v, t))


def gen_ln(a):
    name = "ln_kernel"
    kernel_begin(a, name)
    a("s_cmp_ge_u32 s2, 512")
    a("s_cbranch_scc1 ln_done")
    a("s_load_dwordx2 s[4:5], s[0:1], 0")
    a("s_load_dwordx2 s[6:7], s[0:1], 88")
    a("v_lshrrev_b32 v1, 6, v0")
    a("v_and_b32 v2, 63, v0")
    a("s_lshl_b32 s3, s2, 2")
    a("v_add_u32 v1, s3, v1")
    a("v_lshlrev_b32 v3, 10, v1")
    a("v_lshl_add_u32 v3, v2, 4, v3")
    a("s_waitcnt lgkmcnt(0)")
    srd(a, 8, 4, 5, 2048 * 512 * 2)
    srd(a, 12, 6, 7, 2048 * 512 * 2)
    a("buffer_load_dwordx4 v[4:7], v3, s[8:11], 0 offen")
    a("s_waitcnt vmcnt(0)")
    for i in range(4):
        a("v_lshlrev_b32 v%d, 16, v%d" % (8 + 2 * i, 4 + i))
        a("v_and_b32 v%d, 0xffff0000, v%d" % (9 + 2 * i, 4 + i))
    a("v_add_f32 v16, v8, v9")
    for i in range(10, 16):
        a("v_add_f32 v16, v16, v%d" % i)
    wave_allreduce_add(a, 16, 17)
    a("v_mul_f32 v16, 0x3b000000, v16")
    a("v_sub_f32 v18, v8, v16")
    a("v_mul_f32 v19, v18, v18")
    for i in range(9, 16):
        a("v_sub_f32 v18, v%d, v16" % i)
        a("v_fmac_f32 v19, v18, v18")
    wave_allreduce_add(a, 19, 17)
    a("v_mul_f32 v19, 0x3b000000, v19")
    bf16r(a, 16, 16)
    bf16r(a, 19, 19)
    a("v_add_f32 v19, 0x3727c5ac, v19")
    bf16r(a, 19, 19)
    a("v_sqrt_f32 v19, v19")
    a("s_nop 0")
    bf16r(a, 19, 19)
    a("v_rcp_f32 v20, v19")
    a("s_nop 0")
    for i in range(8):
        r = 8 + i
        a("v_sub_f32 v%d, v%d, v16" % (r, r))
        bf16r(a, r, r)
        a("v_mul_f32 v21, v%d, v20" % r)
        a("v_fma_f32 v22, -v21, v19, v%d" % r)
        a("v_fma_f32 v%d, v22, v20, v21" % r)
    for i in range(4):
        a("v_cvt_pk_bf16_f32 v%d, v%d, v%d" % (4 + i, 8 + 2 * i, 9 + 2 * i))
    a("buffer_store_dwordx4 v[4:7], v3, s[12:15], 0 offen")
    a.label("ln_done")
    a("s_endpgm")
    return kernel_desc(name, 24, 0, 24)


def gen_k1(a):
    name = "proj_kernel"
    kernel_begin(a, name)
    NKT = 16
    STAGE = 32768
    a("s_and_b32 s16, s2, 31")
    a("s_lshr_b32 s17, s2, 5")
    a("s_cmp_ge_u32 s16, 30")
    a("s_cbranch_scc1 k1_done")
    a("s_cmp_ge_u32 s17, 8")
    a("s_cbranch_scc1 k1_done")
    a("s_load_dwordx2 s[4:5], s[0:1], 24")
    a("s_load_dwordx4 s[8:11], s[0:1], 48")
    a("s_load_dwordx2 s[6:7], s[0:1], 88")
    a("v_lshrrev_b32 v1, 6, v0")
    a("v_and_b32 v0, 63, v0")
    a("s_nop 0")
    a("v_readfirstlane_b32 s18, v1")
    a("s_waitcnt lgkmcnt(0)")
    srd(a, 20, 6, 7, 2048 * 512 * 2)
    a("s_lshr_b32 s37, s18, 1")
    a("s_cmp_lt_u32 s16, 16")
    a("s_cselect_b32 s35, 1, 0")
    a("s_cbranch_scc0 k1_selgu")
    a("s_lshl_b32 s38, s16, 9")
    a("s_lshl_b32 s39, s37, 8")
    a("s_add_u32 s38, s38, s39")
    a("s_add_u32 s40, s4, s38")
    a("s_addc_u32 s41, s5, 0")
    a("s_mov_b32 s42, 8192")
    a("s_mov_b32 s43, 0x%x" % (512 * 8192))
    a("s_sub_u32 s43, s43, s38")
    a("s_branch k1_seldone")
    a.label("k1_selgu")
    a("s_sub_u32 s38, s16, 16")
    a("s_lshl_b32 s38, s38, 8")
    a("s_cmp_eq_u32 s37, 0")
    a("s_cselect_b32 s40, s8, s10")
    a("s_cselect_b32 s41, s9, s11")
    a("s_add_u32 s40, s40, s38")
    a("s_addc_u32 s41, s41, 0")
    a("s_mov_b32 s42, 3584")
    a("s_mov_b32 s43, 0x%x" % (512 * 3584))
    a("s_sub_u32 s43, s43, s38")
    a.label("k1_seldone")
    a("s_mov_b32 s24, s40")
    a("s_and_b32 s25, s41, 0xffff")
    a("s_mov_b32 s26, s43")
    a("s_mov_b32 s27, 0x00020000")
    a("s_lshl_b32 s30, s42, 5")
    a("s_and_b32 s38, s18, 1")
    a("s_lshl_b32 s39, s38, 4")
    a("s_mul_i32 s29, s39, s42")
    a("s_lshl_b32 s28, s17, 18")
    a("s_lshl_b32 s39, s18, 16")
    a("s_add_u32 s28, s28, s39")
    a("s_lshl_b32 s31, s18, 12")
    a("s_lshl_b32 s32, s37, 13")
    a("s_lshl_b32 s39, s38, 12")
    a("s_add_u32 s32, s32, s39")
    a("s_add_u32 s32, s32, 16384")
    a("v_lshrrev_b32 v1, 2, v0")
    a("v_and_b32 v2, 3, v0")
    a("v_lshrrev_b32 v3, 4, v0")
    a("v_and_b32 v4, 3, v3")
    a("v_xor_b32 v2, v2, v4")
    a("v_lshlrev_b32 v2, 4, v2")
    a("v_lshl_add_u32 v2, v1, 10, v2")
    for j in range(4):
        a("v_add_u32 v%d, 0x%x, v2" % (200 + j, j * 16 * 1024 - j * 1024))
    a("v_and_b32 v1, 15, v0")
    a("v_lshlrev_b32 v4, 2, v3")
    a("v_xor_b32 v1, v1, v4")
    a("v_lshlrev_b32 v1, 4, v1")
    a("v_mul_lo_u32 v4, v3, s42")
    a("v_add_u32 v1, v1, v4")
    a("s_lshl_b32 s39, s42, 2")
    a("s_sub_u32 s39, s39, 1024")
    a("v_mov_b32 v204, v1")
    for j in range(1, 4):
        a("v_add_u32 v%d, s39, v%d" % (204 + j, 204 + j - 1))
    a("s_lshr_b32 s44, s18, 1")
    a("s_and_b32 s45, s18, 1")
    a("v_and_b32 v1, 31, v0")
    a("v_lshrrev_b32 v2, 5, v0")
    a("v_lshrrev_b32 v3, 2, v0")
    a("v_and_b32 v3, 3, v3")
    a("v_xor_b32 v4, v2, v3")
    a("v_xor_b32 v5, 2, v4")
    a("s_lshl_b32 s39, s44, 13")
    a("v_lshlrev_b32 v1, 6, v1")
    a("v_add_u32 v1, s39, v1")
    a("v_lshl_add_u32 v208, v4, 4, v1")
    a("v_lshl_add_u32 v209, v5, 4, v1")
    a("v_lshrrev_b32 v1, 4, v0")
    a("v_and_b32 v1, 1, v1")
    a("v_and_b32 v3, 15, v0")
    a("v_lshrrev_b32 v3, 2, v3")
    a("v_and_b32 v4, 3, v0")
    a("v_lshrrev_b32 v5, 1, v4")
    a("v_lshl_add_u32 v5, v1, 1, v5")
    a("s_lshl_b32 s39, s45, 3")
    a("v_add_u32 v5, s39, v5")
    a("v_lshlrev_b32 v6, 2, v3")
    a("v_xor_b32 v7, v5, v6")
    a("v_xor_b32 v8, 4, v7")
    a("v_lshl_add_u32 v9, v2, 3, v3")
    a("v_lshlrev_b32 v9, 8, v9")
    a("v_and_b32 v4, 1, v4")
    a("v_lshl_add_u32 v9, v4, 3, v9")
    a("v_add_u32 v9, 0x4000, v9")
    a("v_lshl_add_u32 v210, v7, 4, v9")
    a("v_lshl_add_u32 v211, v8, 4, v9")
    a("v_mov_b32 v212, v0")
    for i in range(256):
        a("v_accvgpr_write_b32 a%d, 0" % i)

    def dma_tile():
        ins = []
        ins.append("s_add_u32 m0, s31, s33")
        for j in range(4):
            ins.append("buffer_load_dwordx4 v%d, s[20:23], s28 offen offset:%d lds" % (200 + j, j * 1024))
        ins.append("s_add_u32 m0, s32, s33")
        for j in range(4):
            ins.append("buffer_load_dwordx4 v%d, s[24:27], s29 offen offset:%d lds" % (204 + j, j * 1024))
        ins.append("s_add_u32 s28, s28, 64")
        ins.append("s_add_u32 s29, s29, s30")
        ins.append("s_add_u32 s33, s33, 0x%x" % STAGE)
        ins.append("s_and_b32 s33, s33, 0x1ffff")
        return ins

    a("s_mov_b32 s33, 0")
    for _ in range(3):
        prev = None
        for ins in dma_tile():
            if prev is not None and prev.startswith("s_add_u32 m0") and ins.startswith("buffer"):
                a("s_nop 0")
            a(ins)
            prev = ins
    a("s_waitcnt vmcnt(8)")
    a("s_barrier")

    def frag_reads(setn, ks):
        base = setn * 32
        ins = []
        for rt in range(4):
            ins.append("ds_read_b128 v[%d:%d], v%d offset:%d" % (base + 16 + rt * 4, base + 19 + rt * 4,
                                                                  208 + ks, rt * 2048))
        for nt in range(4):
            sub, t = nt >> 1, nt & 1
            for p in range(2):
                off = sub * 8192 + ks * 4096 + p * 1024
                r0 = base + nt * 4 + p * 2
                ins.append("ds_read_b64_tr_b16 v[%d:%d], v%d offset:%d" % (r0, r0 + 1, 210 + t, off))
        order = [ins[0], ins[4], ins[5], ins[1], ins[6], ins[7], ins[2], ins[8], ins[9], ins[3], ins[10], ins[11]]
        return order

    for ins in frag_reads(0, 0):
        a(ins)
    a("s_mov_b32 s34, 0")
    a("s_mov_b32 s48, 0x%x" % STAGE)
    a("s_mov_b32 s49, 0x%x" % ((-3 * STAGE) & 0xffffffff))
    a("s_mov_b32 s46, 0")
    a.label("k1_loop")
    for ks in range(2):
        setn = ks
        fill = []
        if ks == 0:
            fill += frag_reads(1, 1)
            fill += dma_tile()
        else:
            upd = ["s_add_u32 s46, s46, 1",
                   "s_and_b32 s46, s46, 3",
                   "s_cmp_eq_u32 s46, 0",
                   "s_cselect_b32 s36, s49, s48"]
            for r in (208, 209, 210, 211):
                upd.append("v_add_u32 v%d, s36, v%d" % (r, r))
            fill += upd
            fill += frag_reads(0, 0)
        a("s_waitcnt lgkmcnt(0)")
        mf = []
        for nt in range(4):
            for rt in range(4):
                acc = (nt * 4 + rt) * 16
                mf.append("v_mfma_f32_32x32x16_bf16 a[%d:%d], v[%d:%d], v[%d:%d], a[%d:%d]" % (
                    acc, acc + 15, setn * 32 + nt * 4, setn * 32 + nt * 4 + 3,
                    setn * 32 + 16 + rt * 4, setn * 32 + 19 + rt * 4, acc, acc + 15))
        fi = 0
        for mi, m in enumerate(mf):
            a(m)
            remaining_m = len(mf) - mi
            n = -(-(len(fill) - fi) // max(remaining_m - 3, 1)) if fi < len(fill) else 0
            n = min(n, 3)
            for _ in range(n):
                if fi < len(fill):
                    ins = fill[fi]
                    a(ins)
                    if ins.startswith("s_add_u32 m0"):
                        a("s_nop 0")
                    fi += 1
        while fi < len(fill):
            a(fill[fi])
            if fill[fi].startswith("s_add_u32 m0"):
                a("s_nop 0")
            fi += 1
    a("s_waitcnt vmcnt(8)")
    a("s_barrier")
    a("s_add_u32 s34, s34, 1")
    a("s_cmp_lt_u32 s34, %d" % NKT)
    a("s_cbranch_scc1 k1_loop")
    a("s_waitcnt vmcnt(0) lgkmcnt(0)")
    a("s_nop 15")
    a("s_nop 7")
    a("v_mov_b32 v0, v212")
    a("v_and_b32 v1, 31, v0")
    a("v_lshrrev_b32 v2, 5, v0")
    a("s_lshl_b32 s38, s17, 8")
    a("s_lshl_b32 s39, s44, 7")
    a("s_add_u32 s38, s38, s39")
    a("v_add_u32 v1, s38, v1")
    a("s_cmp_eq_u32 s35, 0")
    a("s_cbranch_scc1 k1_epi_gu")
    add64(a, 40, 6, 7, WS_Q)
    srd(a, 24, 40, 41, 2048 * 4096 * 2)
    a("v_lshlrev_b32 v3, 13, v1")
    a("s_lshl_b32 s38, s16, 9")
    a("s_lshl_b32 s39, s45, 7")
    a("s_add_u32 s38, s38, s39")
    a("v_lshl_add_u32 v3, v2, 4, v3")
    a("v_add_u32 v3, s38, v3")
    for rt in range(4):
        for nt in range(4):
            sub, t = nt >> 1, nt & 1
            acc = (nt * 4 + rt) * 16
            for pr in range(2):
                for i in range(8):
                    a("v_accvgpr_read_b32 v%d, a%d" % (8 + i, acc + pr * 8 + i))
                for i in range(4):
                    a("v_cvt_pk_bf16_f32 v%d, v%d, v%d" % (16 + i, 8 + 2 * i, 9 + 2 * i))
                a("s_nop 1")
                a("v_permlane32_swap_b32 v16, v18")
                a("v_permlane32_swap_b32 v17, v19")
                off = sub * 256 + t * 64 + pr * 32
                a("buffer_store_dwordx4 v[16:19], v3, s[24:27], 0 offen offset:%d" % off)
                a("s_nop 1")
        if rt < 3:
            a("v_add_u32 v3, 0x%x, v3" % (32 * 8192))
    a("s_branch k1_done")
    a.label("k1_epi_gu")
    add64(a, 40, 6, 7, WS_H)
    srd(a, 24, 40, 41, 2048 * 1792 * 2)
    a("s_mov_b32 s38, 3584")
    a("v_mul_lo_u32 v3, v1, s38")
    a("s_sub_u32 s38, s16, 16")
    a("s_lshl_b32 s38, s38, 8")
    a("s_lshl_b32 s39, s45, 7")
    a("s_add_u32 s38, s38, s39")
    a("v_lshl_add_u32 v3, v2, 4, v3")
    a("v_add_u32 v3, s38, v3")
    a("s_mov_b32 s46, 0x3d372713")
    a("s_mov_b32 s47, 0xc0135761")
    for rt in range(4):
        for t in range(2):
            accg = (t * 4 + rt) * 16
            accu = ((2 + t) * 4 + rt) * 16
            for pr in range(2):
                for i in range(8):
                    g, u, z = 8 + i, 24 + i, 32 + i
                    a("v_accvgpr_read_b32 v%d, a%d" % (g, accg + pr * 8 + i))
                    a("v_accvgpr_read_b32 v%d, a%d" % (u, accu + pr * 8 + i))
                for i in range(8):
                    g, u, z = 8 + i, 24 + i, 32 + i
                    bf16r(a, g, g)
                    bf16r(a, u, u)
                    a("v_mul_f32 v%d, v%d, v%d" % (z, g, g))
                    a("v_fma_f32 v%d, v%d, s46, 1.0" % (z, z))
                    a("v_mul_f32 v%d, v%d, v%d" % (z, z, g))
                    a("v_mul_f32 v%d, s47, v%d" % (z, z))
                    a("v_exp_f32 v%d, v%d" % (z, z))
                for i in range(8):
                    g, u, z = 8 + i, 24 + i, 32 + i
                    a("v_add_f32 v%d, 1.0, v%d" % (z, z))
                    a("v_rcp_f32 v%d, v%d" % (z, z))
                for i in range(8):
                    g, u, z = 8 + i, 24 + i, 32 + i
                    a("v_mul_f32 v%d, v%d, v%d" % (g, g, z))
                    bf16r(a, g, g)
                    a("v_mul_f32 v%d, v%d, v%d" % (g, g, u))
                for i in range(4):
                    a("v_cvt_pk_bf16_f32 v%d, v%d, v%d" % (16 + i, 8 + 2 * i, 9 + 2 * i))
                a("s_nop 1")
                a("v_permlane32_swap_b32 v16, v18")
                a("v_permlane32_swap_b32 v17, v19")
                off = t * 64 + pr * 32
                a("buffer_store_dwordx4 v[16:19], v3, s[24:27], 0 offen offset:%d" % off)
                a("s_nop 1")
        if rt < 3:
            a("v_add_u32 v3, 0x%x, v3" % (32 * 3584))
    a.label("k1_done")
    a("s_endpgm")
    return kernel_desc(name, 256, 256)


def gen_attn(a):
    name = "attn_kernel"
    kernel_begin(a, name)
    TLOG = 32
    A_O, A_Q, A_F = 0, 128, 192
    V_S, V_P, V_T, V_TS, V_L, V_MC, V_KA, V_VA, V_KD, V_VD = 0, 64, 96, 104, 108, 110, 112, 120, 124, 128
    V_X = 130
    V_LANE = 140

    a("s_cmp_ge_u32 s2, 256")
    a("s_cbranch_scc1 at_done")
    a("s_load_dwordx4 s[4:7], s[0:1], 8")
    a("s_load_dwordx2 s[8:9], s[0:1], 88")
    a("s_and_b32 s38, s2, 7")
    a("s_lshr_b32 s39, s2, 3")
    a("s_and_b32 s40, s39, 3")
    a("s_lshl_b32 s16, s38, 2")
    a("s_add_u32 s16, s16, s40")
    a("s_lshr_b32 s17, s39, 2")
    a("v_lshrrev_b32 v1, 6, v0")
    a("v_and_b32 v%d, 63, v0" % V_LANE)
    a("v_mov_b32 v0, v%d" % V_LANE)
    a("s_nop 0")
    a("v_readfirstlane_b32 s18, v1")
    a("s_waitcnt lgkmcnt(0)")
    srd(a, 20, 4, 5, 32 * 2048 * 128 * 2)
    srd(a, 24, 6, 7, 32 * 2048 * 128 * 2)
    a("s_lshl_b32 s28, s16, 19")
    a("s_lshl_b32 s38, s18, 12")
    a("s_add_u32 s28, s28, s38")
    a("s_mov_b32 s29, s28")
    a("s_mov_b32 s31, s38")
    a("s_add_u32 s32, s38, 0x10000")
    a("s_mov_b32 s36, 0x3e0293ee")
    a("s_mov_b32 s37, 0x%x" % ((127 + TLOG) << 23))
    a("s_mov_b32 s48, 0x4000")
    a("s_mov_b32 s49, 0x%x" % ((-3 * 16384) & 0xffffffff))
    a("v_lshrrev_b32 v1, 4, v0")
    a("v_and_b32 v2, 15, v0")
    for j in range(4):
        a("v_add_u32 v3, %d, v1" % (4 * j))
        a("v_xor_b32 v3, v2, v3")
        a("v_lshlrev_b32 v3, 4, v3")
        a("v_lshl_add_u32 v%d, v1, 8, v3" % (V_KD + j))
    a("v_lshlrev_b32 v3, 2, v1")
    a("v_xor_b32 v3, v2, v3")
    a("v_lshlrev_b32 v3, 4, v3")
    a("v_lshl_add_u32 v%d, v1, 8, v3" % V_VD)
    a("v_and_b32 v1, 31, v0")
    a("v_lshrrev_b32 v2, 5, v0")
    a("v_and_b32 v3, 15, v0")
    a("v_lshlrev_b32 v4, 8, v1")
    for ds in range(8):
        a("v_add_u32 v5, %d, v2" % (2 * ds))
        a("v_xor_b32 v5, v5, v3")
        a("v_lshl_add_u32 v%d, v5, 4, v4" % (V_KA + ds))
    a("v_lshrrev_b32 v1, 4, v0")
    a("v_and_b32 v1, 1, v1")
    a("v_lshrrev_b32 v3, 2, v3")
    a("v_and_b32 v4, 3, v0")
    a("v_lshrrev_b32 v5, 1, v4")
    a("v_lshl_add_u32 v5, v1, 1, v5")
    a("v_lshl_add_u32 v6, v2, 2, v3")
    a("v_lshlrev_b32 v6, 8, v6")
    a("v_and_b32 v4, 1, v4")
    a("v_lshl_add_u32 v6, v4, 3, v6")
    a("v_add_u32 v6, 0x1c000, v6")
    for dt in range(4):
        a("v_xor_b32 v7, %d, v3" % dt)
        a("v_lshl_add_u32 v7, v7, 2, v5")
        a("v_lshl_add_u32 v%d, v7, 4, v6" % (V_VA + dt))

    def dma(which):
        ins = []
        if which == "K":
            ins.append("s_add_u32 m0, s31, s33")
            for j in range(4):
                ins.append("buffer_load_dwordx4 v%d, s[20:23], s28 offen offset:%d lds" % (V_KD + j, j * 1024))
            ins.append("s_add_u32 s28, s28, 0x4000")
            ins.append("s_add_u32 s33, s33, 0x4000")
            ins.append("s_and_b32 s33, s33, 0xffff")
        else:
            ins.append("s_add_u32 m0, s32, s34")
            for j in range(4):
                ins.append("buffer_load_dwordx4 v%d, s[24:27], s29 offen offset:%d lds" % (V_VD, j * 1024))
            ins.append("s_add_u32 s29, s29, 0x4000")
            ins.append("s_add_u32 s34, s34, 0x4000")
            ins.append("s_and_b32 s34, s34, 0xffff")
        return ins

    def emit_list(lst):
        for ins in lst:
            a(ins)
            if ins.startswith("s_add_u32 m0"):
                a("s_nop 0")

    a("s_mov_b32 s33, 0")
    a("s_mov_b32 s34, 0xc000")
    for _ in range(3):
        emit_list(dma("K"))
    emit_list(dma("V"))
    a("s_sub_u32 s29, s29, 0x4000")
    emit_list(dma("V"))
    emit_list(dma("V"))
    add64(a, 40, 8, 9, WS_Q)
    srd(a, 44, 40, 41, 2048 * 4096 * 2)
    a("v_and_b32 v1, 31, v0")
    a("s_lshl_b32 s38, s17, 8")
    a("s_lshl_b32 s39, s18, 6")
    a("s_add_u32 s38, s38, s39")
    a("v_add_u32 v1, s38, v1")
    a("v_lshlrev_b32 v1, 13, v1")
    a("v_lshl_add_u32 v1, v2, 4, v1")
    a("s_lshl_b32 s38, s16, 8")
    a("v_add_u32 v%d, s38, v1" % (V_X + 8))
    a("v_add_u32 v%d, 0x40000, v%d" % (V_X + 9, V_X + 8))
    for qt in range(2):
        for ds in range(8):
            r = A_Q + (qt * 8 + ds) * 4
            a("buffer_load_dwordx4 a[%d:%d], v%d, s[44:47], 0 offen offset:%d" % (r, r + 3, V_X + 8 + qt, ds * 32))
    for i in range(128):
        a("v_accvgpr_write_b32 a%d, 0" % (A_O + i))
    for i in range(16):
        a("v_mov_b32 v%d, 0" % (V_P + 16 + i))
    a("v_mov_b32 v%d, 0" % V_L)
    a("v_mov_b32 v%d, 0" % (V_L + 1))
    a("v_mov_b32 v%d, 0xff800000" % V_MC)
    a("v_mov_b32 v%d, 0xff800000" % (V_MC + 1))
    a("s_waitcnt vmcnt(0)")
    a("s_barrier")

    def kread(slot, ds, half):
        r = A_F + slot * 4
        return "ds_read_b128 a[%d:%d], v%d offset:%d" % (r, r + 3, V_KA + ds, half * 8192)

    def vread(slot, dt, ks, half):
        r = A_F + slot * 4
        return ["ds_read_b64_tr_b16 a[%d:%d], v%d offset:%d" % (
            r + 2 * p, r + 2 * p + 1, V_VA + dt, (32 * half + 16 * ks + 8 * p) * 256) for p in range(2)]

    def qk_mfma(slot, nb, qt, ds):
        d = V_S + (nb * 2 + qt) * 16
        r = A_F + slot * 4
        q = A_Q + (qt * 8 + ds) * 4
        c = "0" if ds == 0 else "v[%d:%d]" % (d, d + 15)
        return "v_mfma_f32_32x32x16_bf16 v[%d:%d], a[%d:%d], a[%d:%d], %s" % (d, d + 15, r, r + 3, q, q + 3, c)

    def pv_mfma(slot, pb, qt, dt, ks):
        o = A_O + (qt * 4 + dt) * 16
        r = A_F + slot * 4
        p = V_P + (pb * 2 + qt) * 8 + ks * 4
        return "v_mfma_f32_32x32x16_bf16 a[%d:%d], a[%d:%d], v[%d:%d], a[%d:%d]" % (o, o + 15, r, r + 3, p, p + 3, o, o + 15)

    for ds in range(8):
        a(kread(ds % 4, ds, 0))
        if ds % 4 == 3:
            a("s_waitcnt lgkmcnt(0)")
            for d2 in range(ds - 3, ds + 1):
                for qt in range(2):
                    a(qk_mfma(d2 % 4, 0, qt, d2))
            a("s_nop 7")
    for p in range(3):
        a(kread(p, p, 1))

    def softmax_fill(b, first_ts_mov=True):
        st = []
        np_ = 16
        def regs(k):
            qt, kk = k // 8, k % 8
            s0 = V_S + (b * 2 + qt) * 16 + 2 * kk
            t0 = V_T + (k % 4) * 2
            return qt, kk, s0, t0
        def A(k):
            qt, kk, s0, t0 = regs(k)
            return ["v_fma_f32 v%d, v%d, s36, -v%d" % (t0, s0, V_MC + qt),
                    "v_fma_f32 v%d, v%d, s36, -v%d" % (t0 + 1, s0 + 1, V_MC + qt)]
        def B(k):
            qt, kk, s0, t0 = regs(k)
            return ["v_exp_f32 v%d, v%d" % (t0, t0), "v_exp_f32 v%d, v%d" % (t0 + 1, t0 + 1)]
        def C(k):
            qt, kk, s0, t0 = regs(k)
            ta, tb = V_TS + qt * 2, V_TS + qt * 2 + 1
            if kk == 0:
                o = ["v_mov_b32 v%d, v%d" % (ta, t0), "v_mov_b32 v%d, v%d" % (tb, t0 + 1)]
            else:
                o = ["v_add_f32 v%d, v%d, v%d" % (ta, ta, t0), "v_add_f32 v%d, v%d, v%d" % (tb, tb, t0 + 1)]
            o.append("v_cvt_pk_bf16_f32 v%d, v%d, v%d" % (V_P + (b * 2 + qt) * 8 + kk, t0, t0 + 1))
            return o
        st += A(0) + A(1) + B(0)
        for k in range(np_):
            if k + 2 < np_:
                st += A(k + 2)
            if k + 1 < np_:
                st += B(k + 1)
            st += C(k)
        return st

    a("s_mov_b32 s35, 0")
    a("s_mov_b32 s46, 0")
    a("s_mov_b32 s47, 3")
    a.label("at_loop")
    for step in range(2):
        b = step
        nb = 1 - b
        khalf = 1 - step
        vhalf = 1 - step
        valu = softmax_fill(b)
        extra = {p: [] for p in range(16)}
        if step == 0:
            d = dma("K")
            extra[1] += d[0:2]
            extra[2] += d[2:3]
            extra[3] += d[3:4]
            extra[4] += d[4:]
            upd = ["s_add_u32 s46, s46, 1", "s_and_b32 s46, s46, 3", "s_cmp_eq_u32 s46, 0",
                   "s_cselect_b32 s50, s49, s48"]
            extra[8] += upd + ["v_add_u32 v%d, s50, v%d" % (V_KA + i, V_KA + i) for i in range(4)]
            extra[9] += ["v_add_u32 v%d, s50, v%d" % (V_KA + i, V_KA + i) for i in range(4, 8)]
        else:
            d = dma("V")
            extra[1] += d[0:2]
            extra[2] += d[2:3]
            extra[3] += d[3:4]
            extra[4] += d[4:]
            upd = ["s_add_u32 s47, s47, 1", "s_and_b32 s47, s47, 3", "s_cmp_eq_u32 s47, 0",
                   "s_cselect_b32 s50, s49, s48"]
            extra[0] += upd + ["v_add_u32 v%d, s50, v%d" % (V_VA + i, V_VA + i) for i in range(4)]
        nvalu = len(valu)
        vi = 0
        for p in range(16):
            slot = p % 4
            def nops(pp):
                return 1 if (pp % 16) < 8 else 2
            a("s_waitcnt lgkmcnt(%d)" % (nops(p + 1) + nops(p + 2)))
            for qt in range(2):
                if p < 8:
                    a(qk_mfma(slot, nb, qt, p))
                else:
                    a(pv_mfma(slot, nb, qt, (p - 8) >> 1, (p - 8) & 1))
                if qt == 0:
                    pp = p + 3
                    if pp < 8:
                        a(kread(pp % 4, pp, khalf))
                    elif pp < 16:
                        for ins in vread(pp % 4, (pp - 8) >> 1, (pp - 8) & 1, vhalf):
                            a(ins)
                    else:
                        a(kread(pp % 4, pp - 16, step))
                    emit_list(extra[p])
                tgt = (nvalu * (2 * p + qt + 1)) // 30
                while vi < min(tgt, nvalu):
                    a(valu[vi])
                    vi += 1
        while vi < nvalu:
            a(valu[vi])
            vi += 1
        a("v_add_f32 v%d, v%d, v%d" % (V_TS, V_TS, V_TS + 1))
        a("v_add_f32 v%d, v%d, v%d" % (V_TS + 2, V_TS + 2, V_TS + 3))
        a("v_max_f32 v%d, v%d, v%d" % (V_X, V_TS, V_TS + 2))
        a("v_cmp_nge_f32 vcc, s37, v%d" % V_X)
        a("s_cbranch_vccnz at_slow%d" % b)
        a.label("at_back%d" % b)
        a("v_add_f32 v%d, v%d, v%d" % (V_L, V_L, V_TS))
        a("v_add_f32 v%d, v%d, v%d" % (V_L + 1, V_L + 1, V_TS + 2))
    a("s_waitcnt vmcnt(8)")
    a("s_barrier")
    a("s_add_u32 s35, s35, 1")
    a("s_cmp_lt_u32 s35, 32")
    a("s_cbranch_scc1 at_loop")
    a("s_waitcnt lgkmcnt(0)")
    for grp in range(2):
        for pp in range(4):
            p = grp * 4 + pp
            for ins in vread(pp, p >> 1, p & 1, 1):
                a(ins)
        a("s_waitcnt lgkmcnt(0)")
        for pp in range(4):
            p = grp * 4 + pp
            for qt in range(2):
                a(pv_mfma(pp, 1, qt, p >> 1, p & 1))
        a("s_nop 7")
    a("s_nop 15")
    add64(a, 40, 8, 9, WS_O)
    srd(a, 44, 40, 41, 2048 * 4096 * 2)
    for qt in range(2):
        a("v_mov_b32 v%d, v%d" % (V_X, V_L + qt))
        a("s_nop 1")
        a("v_permlane32_swap_b32 v%d, v%d" % (V_L + qt, V_X))
        a("s_nop 1")
        a("v_add_f32 v%d, v%d, v%d" % (V_X, V_X, V_L + qt))
        a("v_rcp_f32 v%d, v%d" % (V_X + 1, V_X))
        a("s_nop 0")
        for dt in range(4):
            o = A_O + (qt * 4 + dt) * 16
            for pr in range(2):
                for i in range(8):
                    a("v_accvgpr_read_b32 v%d, a%d" % (8 + i, o + pr * 8 + i))
                for i in range(8):
                    a("v_mul_f32 v%d, v%d, v%d" % (8 + i, 8 + i, V_X + 1))
                for i in range(4):
                    a("v_cvt_pk_bf16_f32 v%d, v%d, v%d" % (16 + i, 8 + 2 * i, 9 + 2 * i))
                a("s_nop 1")
                a("v_permlane32_swap_b32 v16, v18")
                a("v_permlane32_swap_b32 v17, v19")
                a("buffer_store_dwordx4 v[16:19], v%d, s[44:47], 0 offen offset:%d" % (V_X + 8 + qt, dt * 64 + pr * 32))
                a("s_nop 1")
    a("s_branch at_done")
    for b in range(2):
        a.label("at_slow%d" % b)
        a("s_nop 15")
        for qt in range(2):
            s0 = V_S + (b * 2 + qt) * 16
            x = V_X
            a("v_max3_f32 v%d, v%d, v%d, v%d" % (x, s0, s0 + 1, s0 + 2))
            for i in range(3, 15, 2):
                a("v_max3_f32 v%d, v%d, v%d, v%d" % (x, x, s0 + i, s0 + i + 1))
            a("v_max_f32 v%d, v%d, v%d" % (x, x, s0 + 15))
            a("v_mov_b32 v%d, v%d" % (x + 1, x))
            a("s_nop 1")
            a("v_permlane32_swap_b32 v%d, v%d" % (x, x + 1))
            a("s_nop 1")
            a("v_max_f32 v%d, v%d, v%d" % (x, x, x + 1))
            a("v_mul_f32 v%d, s36, v%d" % (x, x))
            a("v_max_f32 v%d, v%d, v%d" % (x, x, V_MC + qt))
            a("v_sub_f32 v%d, v%d, v%d" % (x + 1, V_MC + qt, x))
            a("v_exp_f32 v%d, v%d" % (x + 1, x + 1))
            a("v_mov_b32 v%d, v%d" % (V_MC + qt, x))
            a("v_mul_f32 v%d, v%d, v%d" % (V_L + qt, V_L + qt, x + 1))
            for blk in range(16):
                o = A_O + qt * 64 + blk * 4
                for i in range(4):
                    a("v_accvgpr_read_b32 v%d, a%d" % (x + 2 + i, o + i))
                for i in range(4):
                    a("v_mul_f32 v%d, v%d, v%d" % (x + 2 + i, x + 2 + i, x + 1))
                for i in range(4):
                    a("v_accvgpr_write_b32 a%d, v%d" % (o + i, x + 2 + i))
        for ins in softmax_fill(b):
            a(ins)
        a("v_add_f32 v%d, v%d, v%d" % (V_TS, V_TS, V_TS + 1))
        a("v_add_f32 v%d, v%d, v%d" % (V_TS + 2, V_TS + 2, V_TS + 3))
        a("s_nop 1")
        a("s_branch at_back%d" % b)
    a.label("at_done")
    a("s_endpgm")
    return kernel_desc(name, 256, 256)


def gen_k3(a):
    name = "out_kernel"
    kernel_begin(a, name)
    STAGE = 32768
    V_AD, V_BD, V_AD2 = 200, 204, 208
    V_XA, V_WA = 212, 214
    V_LANE = 216
    a("s_cmp_ge_u32 s2, 256")
    a("s_cbranch_scc1 k3_done")
    a("s_load_dwordx2 s[4:5], s[0:1], 0")
    a("s_load_dwordx2 s[6:7], s[0:1], 32")
    a("s_load_dwordx2 s[8:9], s[0:1], 64")
    a("s_load_dwordx2 s[10:11], s[0:1], 72")
    a("s_load_dwordx2 s[12:13], s[0:1], 88")
    a("s_and_b32 s38, s2, 7")
    a("s_lshr_b32 s39, s2, 3")
    a("s_and_b32 s40, s39, 3")
    a("s_lshl_b32 s16, s38, 2")
    a("s_add_u32 s16, s16, s40")
    a("s_lshr_b32 s17, s2, 5")
    a("v_lshrrev_b32 v1, 6, v0")
    a("v_and_b32 v0, 63, v0")
    a("v_mov_b32 v%d, v0" % V_LANE)
    a("s_nop 0")
    a("v_readfirstlane_b32 s18, v1")
    a("s_waitcnt lgkmcnt(0)")
    add64(a, 40, 12, 13, WS_O)
    srd(a, 20, 40, 41, 2048 * 4096 * 2)
    add64(a, 40, 12, 13, WS_H)
    srd(a, 52, 40, 41, 2048 * 1792 * 2)
    srd(a, 24, 6, 7, 4096 * 512 * 2)
    srd(a, 56, 8, 9, 1792 * 512 * 2)
    a("s_lshl_b32 s38, s16, 6")
    a("s_lshl_b32 s39, s18, 4")
    a("s_add_u32 s38, s38, s39")
    a("s_lshl_b32 s28, s38, 13")
    a("s_mul_i32 s60, s38, 3584")
    a("s_lshl_b32 s29, s18, 15")
    a("s_lshl_b32 s39, s17, 7")
    a("s_add_u32 s29, s29, s39")
    a("s_mov_b32 s61, s29")
    a("s_lshl_b32 s31, s18, 12")
    a("s_add_u32 s32, s31, 0x4000")
    a("s_mov_b32 s48, 0x%x" % STAGE)
    a("s_mov_b32 s49, 0x%x" % ((-3 * STAGE) & 0xffffffff))
    a("v_lshrrev_b32 v1, 4, v0")
    a("v_and_b32 v2, 15, v0")
    a("s_mov_b32 s39, 3584")
    for j in range(4):
        a("v_add_u32 v3, %d, v1" % (4 * j))
        a("v_xor_b32 v4, v2, v3")
        a("v_lshlrev_b32 v4, 4, v4")
        a("v_lshl_add_u32 v5, v3, 13, v4")
        a("v_subrev_u32 v%d, %d, v5" % (V_AD + j, 1024 * j))
        a("v_mul_lo_u32 v5, v3, s39")
        a("v_add_u32 v5, v5, v4")
        a("v_subrev_u32 v%d, %d, v5" % (V_AD2 + j, 1024 * j))
    a("v_lshrrev_b32 v1, 3, v0")
    a("v_and_b32 v2, 7, v0")
    a("v_lshrrev_b32 v3, 4, v0")
    a("v_and_b32 v3, 1, v3")
    a("v_lshlrev_b32 v3, 2, v3")
    a("v_xor_b32 v2, v2, v3")
    a("v_lshlrev_b32 v2, 4, v2")
    a("v_lshl_add_u32 v2, v1, 10, v2")
    for j in range(4):
        a("v_add_u32 v%d, %d, v2" % (V_BD + j, 8 * j * 1024 - 1024 * j))
    a("v_and_b32 v1, 31, v0")
    a("v_lshrrev_b32 v2, 5, v0")
    a("v_and_b32 v3, 15, v0")
    a("v_lshlrev_b32 v4, 8, v1")
    a("s_lshl_b32 s38, s18, 1")
    a("v_add_u32 v5, s38, v2")
    a("v_xor_b32 v6, v5, v3")
    a("v_lshl_add_u32 v%d, v6, 4, v4" % V_XA)
    a("v_xor_b32 v6, 8, v6")
    a("v_lshl_add_u32 v%d, v6, 4, v4" % (V_XA + 1))
    a("v_lshrrev_b32 v1, 4, v0")
    a("v_and_b32 v1, 1, v1")
    a("v_lshrrev_b32 v3, 2, v3")
    a("v_and_b32 v4, 3, v0")
    a("v_lshrrev_b32 v5, 1, v4")
    a("v_lshl_add_u32 v5, v1, 1, v5")
    a("v_lshrrev_b32 v6, 1, v3")
    a("v_lshlrev_b32 v6, 2, v6")
    a("v_xor_b32 v5, v5, v6")
    a("v_xor_b32 v6, 4, v5")
    a("v_lshl_add_u32 v7, v2, 3, v3")
    a("s_lshl_b32 s38, s18, 4")
    a("v_add_u32 v7, s38, v7")
    a("v_lshlrev_b32 v7, 7, v7")
    a("v_and_b32 v4, 1, v4")
    a("v_lshl_add_u32 v7, v4, 3, v7")
    a("v_add_u32 v7, 0x4000, v7")
    a("v_lshl_add_u32 v%d, v5, 4, v7" % V_WA)
    a("v_lshl_add_u32 v%d, v6, 4, v7" % (V_WA + 1))
    for i in range(128):
        a("v_accvgpr_write_b32 a%d, 0" % i)

    cnt = [0]

    def dma_tile():
        ins = []
        n = cnt[0]
        cnt[0] += 1
        blk = ["s_cmp_eq_u32 s34, 32", "s_cbranch_scc0 k3_nosw%d" % n]
        for i in range(4):
            blk.append("s_mov_b32 s%d, s%d" % (20 + i, 52 + i))
            blk.append("s_mov_b32 s%d, s%d" % (24 + i, 56 + i))
            blk.append("v_mov_b32 v%d, v%d" % (V_AD + i, V_AD2 + i))
        blk.append("s_mov_b32 s28, s60")
        blk.append("s_mov_b32 s29, s61")
        blk.append("LABEL k3_nosw%d" % n)
        ins.append("BLOCK " + "|".join(blk))
        ins.append("s_add_u32 m0, s31, s33")
        for j in range(4):
            ins.append("buffer_load_dwordx4 v%d, s[20:23], s28 offen offset:%d lds" % (V_AD + j, j * 1024))
        ins.append("s_add_u32 m0, s32, s33")
        for j in range(4):
            ins.append("buffer_load_dwordx4 v%d, s[24:27], s29 offen offset:%d lds" % (V_BD + j, j * 1024))
        ins.append("s_add_u32 s28, s28, 256")
        ins.append("s_add_u32 s29, s29, 0x20000")
        ins.append("s_add_u32 s33, s33, 0x%x" % STAGE)
        ins.append("s_and_b32 s33, s33, 0x1ffff")
        ins.append("s_add_u32 s34, s34, 1")
        return ins

    def emit1(ins):
        if ins.startswith("BLOCK "):
            for x in ins[6:].split("|"):
                emit1(x)
        elif ins.startswith("LABEL "):
            a.label(ins[6:])
        else:
            a(ins)
            if ins.startswith("s_add_u32 m0"):
                a("s_nop 0")

    a("s_mov_b32 s33, 0")
    a("s_mov_b32 s34, 0")
    for _ in range(3):
        for ins in dma_tile():
            emit1(ins)
    a("s_waitcnt vmcnt(8)")
    a("s_barrier")

    def frag_reads(setn, kk):
        base = setn * 16
        ins = []
        for rt in range(2):
            ins.append("ds_read_b128 v[%d:%d], v%d offset:%d" % (base + 8 + rt * 4, base + 11 + rt * 4, V_XA + kk, rt * 8192))
        for nt in range(2):
            for p in range(2):
                r0 = base + nt * 4 + p * 2
                ins.append("ds_read_b64_tr_b16 v[%d:%d], v%d offset:%d" % (r0, r0 + 1, V_WA + nt, kk * 8192 + p * 512))
        return [ins[0], ins[2], ins[3], ins[1], ins[4], ins[5]]

    for ins in frag_reads(0, 0):
        a(ins)
    a("s_mov_b32 s46, 0")
    for phase, ntiles in ((0, 32), (1, 14)):
        a("s_mov_b32 s35, 0")
        a.label("k3_loop%d" % phase)
        for kk in range(2):
            fill = []
            if kk == 0:
                fill += frag_reads(1, 1) + dma_tile()
            else:
                fill += ["s_add_u32 s46, s46, 1", "s_and_b32 s46, s46, 3", "s_cmp_eq_u32 s46, 0",
                         "s_cselect_b32 s50, s49, s48"]
                fill += ["v_add_u32 v%d, s50, v%d" % (r, r) for r in (V_XA, V_XA + 1, V_WA, V_WA + 1)]
                fill += frag_reads(0, 0)
            a("s_waitcnt lgkmcnt(0)")
            mf = []
            for nt in range(2):
                for rt in range(2):
                    acc = phase * 64 + (nt * 2 + rt) * 16
                    b = kk * 16
                    mf.append("v_mfma_f32_32x32x16_bf16 a[%d:%d], v[%d:%d], v[%d:%d], a[%d:%d]" % (
                        acc, acc + 15, b + nt * 4, b + nt * 4 + 3, b + 8 + rt * 4, b + 11 + rt * 4, acc, acc + 15))
            per = -(-len(fill) // 4)
            fi = 0
            for m in mf:
                a(m)
                for _ in range(per):
                    if fi < len(fill):
                        emit1(fill[fi])
                        fi += 1
        a("s_waitcnt vmcnt(8)")
        a("s_barrier")
        a("s_add_u32 s35, s35, 1")
        a("s_cmp_lt_u32 s35, %d" % ntiles)
        a("s_cbranch_scc1 k3_loop%d" % phase)
    a("s_waitcnt vmcnt(0) lgkmcnt(0)")
    a("s_barrier")
    a("s_nop 15")
    a("v_mov_b32 v0, v%d" % V_LANE)
    a("v_lshlrev_b32 v1, 2, v0")
    a("s_lshl_b32 s38, s18, 15")
    a("v_add_u32 v1, s38, v1")
    for ph in range(2):
        for tile in range(4):
            for i in range(16):
                if i % 4 == 0:
                    for ii in range(4):
                        a("v_accvgpr_read_b32 v%d, a%d" % (8 + ii, ph * 64 + tile * 16 + i + ii))
                a("ds_write_b32 v1, v%d offset:%d" % (8 + i % 4, (ph * 4 + tile) * 4096 + i * 256))
    a("s_waitcnt lgkmcnt(0)")
    a("s_barrier")
    a("v_lshlrev_b32 v1, 2, v0")
    a("s_lshl_b32 s38, s18, 12")
    a("v_add_u32 v1, s38, v1")
    a("v_add_u32 v2, 0x10000, v1")
    for ph in range(2):
        for src in range(4):
            for i in range(16):
                a("ds_read_b32 v%d, v%d offset:%d" % (64 + src * 16 + i, 1 + (src >> 1), (src & 1) * 32768 + ph * 16384 + i * 256))
        a("s_waitcnt lgkmcnt(0)")
        for i in range(16):
            d = 32 + ph * 16 + i
            a("v_add_f32 v%d, v%d, v%d" % (d, 64 + i, 80 + i))
            a("v_add_f32 v%d, v%d, v%d" % (96 + i, 96 + i, 112 + i))
            a("v_add_f32 v%d, v%d, v%d" % (d, d, 96 + i))
    srd(a, 20, 4, 5, 2048 * 512 * 2)
    srd(a, 24, 10, 11, 2048 * 512 * 2)
    a("v_and_b32 v1, 31, v0")
    a("v_lshrrev_b32 v2, 5, v0")
    a("s_and_b32 s38, s18, 1")
    a("s_lshl_b32 s38, s38, 5")
    a("s_lshl_b32 s39, s16, 6")
    a("s_add_u32 s38, s38, s39")
    a("v_add_u32 v1, s38, v1")
    a("v_lshlrev_b32 v1, 10, v1")
    a("s_lshr_b32 s38, s18, 1")
    a("s_lshl_b32 s38, s38, 6")
    a("s_lshl_b32 s39, s17, 7")
    a("s_add_u32 s38, s38, s39")
    a("v_add_u32 v1, s38, v1")
    a("v_lshl_add_u32 v3, v2, 3, v1")
    a("v_lshl_add_u32 v4, v2, 4, v1")
    for q in range(4):
        a("buffer_load_dwordx2 v[%d:%d], v3, s[20:23], 0 offen offset:%d" % (64 + 2 * q, 65 + 2 * q, q * 16))
    if DEBUG_K3:
        add64(a, 40, 12, 13, 64 << 20)
        srd(a, 44, 40, 41, 16 << 20)
        a("v_lshlrev_b32 v5, 1, v3")
        for q in range(4):
            a("buffer_store_dwordx4 v[%d:%d], v5, s[44:47], 0 offen offset:%d" % (32 + 4 * q, 35 + 4 * q, q * 32))
        a("v_add_u32 v5, 0x800000, v5")
        for q in range(4):
            a("buffer_store_dwordx4 v[%d:%d], v5, s[44:47], 0 offen offset:%d" % (48 + 4 * q, 51 + 4 * q, q * 32))
        a("s_waitcnt vmcnt(0)")
    a("s_mov_b32 s38, 0xbfb8aa3b")
    for i in range(16):
        sv, fv, z = 32 + i, 48 + i, 80 + i
        bf16r(a, sv, sv)
        bf16r(a, fv, fv)
        a("v_mul_f32 v%d, s38, v%d" % (z, fv))
        a("v_exp_f32 v%d, v%d" % (z, z))
    for i in range(16):
        z = 80 + i
        a("v_add_f32 v%d, 1.0, v%d" % (z, z))
        a("v_rcp_f32 v%d, v%d" % (z, z))
    for i in range(16):
        sv, fv, z = 32 + i, 48 + i, 80 + i
        a("v_mul_f32 v%d, v%d, v%d" % (fv, fv, z))
        bf16r(a, fv, fv)
        a("v_mul_f32 v%d, v%d, v%d" % (sv, sv, fv))
        bf16r(a, sv, sv)
    a("s_waitcnt vmcnt(0)")
    for q in range(4):
        for hh in range(2):
            xr = 64 + 2 * q + hh
            a("v_lshlrev_b32 v96, 16, v%d" % xr)
            a("v_and_b32 v97, 0xffff0000, v%d" % xr)
            a("v_add_f32 v96, v96, v%d" % (32 + 4 * q + 2 * hh))
            a("v_add_f32 v97, v97, v%d" % (33 + 4 * q + 2 * hh))
            a("v_cvt_pk_bf16_f32 v%d, v96, v97" % (100 + 2 * q + hh))
    a("s_nop 1")
    for pr in range(2):
        b = 100 + 4 * pr
        a("v_permlane32_swap_b32 v%d, v%d" % (b, b + 2))
        a("v_permlane32_swap_b32 v%d, v%d" % (b + 1, b + 3))
        a("buffer_store_dwordx4 v[%d:%d], v4, s[24:27], 0 offen offset:%d" % (b, b + 3, pr * 32))
    a.label("k3_done")
    a("s_endpgm")
    return kernel_desc(name, 220, 128)


def main():
    a = Asm()
    descs = []
    launches = []
    descs.append(gen_ln(a))
    launches.append("; @launch kernel=ln_kernel grid=(512,1,1) block=(256,1,1) lds=0")
    descs.append(gen_k1(a))
    launches.append("; @launch kernel=proj_kernel grid=(256,1,1) block=(256,1,1) lds=131072")
    descs.append(gen_attn(a))
    launches.append("; @launch kernel=attn_kernel grid=(256,1,1) block=(256,1,1) lds=131072")
    descs.append(gen_k3(a))
    launches.append("; @launch kernel=out_kernel grid=(256,1,1) block=(256,1,1) lds=131072")
    out = HEADER + "\n".join(launches) + "\n"
    out += '.amdgcn_target "amdgcn-amd-amdhsa--gfx950"\n.text\n'
    out += a.text()
    out += '.section .rodata,"a"\n'
    for d in descs:
        out += ".p2align 6\n" + d
    path = sys.argv[1] if len(sys.argv) > 1 else "cdna_kernels/%s.s" % NAME
    open(path, "w").write(out)


if __name__ == "__main__":
    main()
```

```python
import os
import sys

OPT = set(os.environ.get("GENOPT", "").split(","))

NAME = "recurrent_scan__mha_block_cached__glu_gated_geglu__prompt"

WS_XN = 0
WS_Q = 4 << 20
WS_H = 20 << 20
WS_O = 32 << 20
DMA_COST = 12
K3_R = int(os.environ.get("K3_R", "5"))
DEBUG_K3 = False

HEADER = """; Kernarg layout for this problem (96 bytes, ptrs only, base s[0:1]):
"""


class Asm:
    def __init__(self):
        self.lines = []

    def __call__(self, s):
        self.lines.append("    " + s)

    def label(self, l):
        self.lines.append(l + ":")

    def raw(self, s):
        self.lines.append(s)

    def text(self):
        return "\n".join(self.lines) + "\n"


def kernel_begin(a, name):
    a.raw(".globl %s" % name)
    a.raw(".p2align 8")
    a.raw(".type %s,@function" % name)
    a.label(name)


def kernel_desc(name, nvgpr, nagpr, nsgpr=102):
    acc_off = (nvgpr + 3) // 4 * 4
    total = acc_off + nagpr if nagpr else nvgpr
    return """.amdhsa_kernel %s
  .amdhsa_next_free_vgpr %d
  .amdhsa_next_free_sgpr %d
  .amdhsa_accum_offset %d
  .amdhsa_group_segment_fixed_size 0
  .amdhsa_kernarg_size 96
  .amdhsa_user_sgpr_count 2
  .amdhsa_user_sgpr_kernarg_segment_ptr 1
  .amdhsa_system_sgpr_workgroup_id_x 1
.end_amdhsa_kernel
""" % (name, total, nsgpr, acc_off)


def srd(a, d, lo, hi, nbytes):
    a("s_mov_b32 s%d, s%d" % (d, lo))
    a("s_and_b32 s%d, s%d, 0xffff" % (d + 1, hi))
    a("s_mov_b32 s%d, 0x%x" % (d + 2, nbytes))
    a("s_mov_b32 s%d, 0x00020000" % (d + 3))


def add64(a, dlo, lo, hi, imm):
    a("s_add_u32 s%d, s%d, 0x%x" % (dlo, lo, imm))
    a("s_addc_u32 s%d, s%d, 0" % (dlo + 1, hi))


def bf16r(a, dst, src, tmp=None):
    a("v_cvt_pk_bf16_f32 v%d, v%d, v%d" % (dst, src, src))
    a("v_lshlrev_b32 v%d, 16, v%d" % (dst, dst))


def stamp_entry(a):
    if "stamp" not in OPT:
        return
    a("s_memrealtime s[90:91]")


def stamp_exit(a, tag):
    if "stamp" not in OPT:
        return
    a("s_waitcnt vmcnt(0) lgkmcnt(0)")
    a("s_memrealtime s[92:93]")
    a("s_load_dwordx2 s[94:95], s[0:1], 80")
    a("s_waitcnt lgkmcnt(0)")
    a("s_and_b32 s88, s2, 63")
    a("s_cmp_eq_u32 s88, 0")
    a("s_cbranch_scc0 %s_nost" % tag)
    a("s_lshr_b32 s88, s2, 6")
    a("s_lshl_b32 s88, s88, 3")
    a("s_add_u32 s88, s88, 128")
    a("s_mov_b32 s96, s94")
    a("s_and_b32 s97, s95, 0xffff")
    a("s_mov_b32 s98, 256")
    a("s_mov_b32 s99, 0x00020000")
    a("v_mov_b32 v2, s90")
    a("v_mov_b32 v3, s92")
    a("v_mov_b32 v4, s88")
    a("s_mov_b64 exec, 1")
    a("s_nop 4")
    a("buffer_store_dwordx2 v[2:3], v4, s[96:99], 0 offen")
    a("s_waitcnt vmcnt(0)")
    a.label("%s_nost" % tag)

LANE_REG = {}

def wave_allreduce_add(a, v, t):
    for off in (0x041F, 0x081F, 0x101F, 0x201F, 0x401F):
        a("ds_swizzle_b32 v%d, v%d offset:0x%04X" % (t, v, off))
        a("s_waitcnt lgkmcnt(0)")
        a("v_add_f32 v%d, v%d, v%d" % (v, v, t))
    a("v_mov_b32 v%d, v%d" % (t, v))
    a("s_nop 1")
    a("v_permlane32_swap_b32 v%d, v%d" % (v, t))
    a("s_nop 1")
    a("v_add_f32 v%d, v%d, v%d" % (v, v, t))


def gen_ln(a):
    name = "ln_kernel"
    kernel_begin(a, name)
    stamp_entry(a)
    a("s_cmp_ge_u32 s2, 512")
    a("s_cbranch_scc1 ln_done")
    a("s_load_dwordx2 s[4:5], s[0:1], 0")
    a("s_load_dwordx2 s[6:7], s[0:1], 88")
    a("v_lshrrev_b32 v1, 6, v0")
    a("v_and_b32 v2, 63, v0")
    a("s_lshl_b32 s3, s2, 2")
    a("v_add_u32 v1, s3, v1")
    a("v_lshlrev_b32 v3, 10, v1")
    a("v_lshl_add_u32 v3, v2, 4, v3")
    a("s_waitcnt lgkmcnt(0)")
    srd(a, 8, 4, 5, 2048 * 512 * 2)
    srd(a, 12, 6, 7, 2048 * 512 * 2)
    a("buffer_load_dwordx4 v[4:7], v3, s[8:11], 0 offen")
    a("s_waitcnt vmcnt(0)")
    for i in range(4):
        a("v_lshlrev_b32 v%d, 16, v%d" % (8 + 2 * i, 4 + i))
        a("v_and_b32 v%d, 0xffff0000, v%d" % (9 + 2 * i, 4 + i))
    a("v_add_f32 v16, v8, v9")
    for i in range(10, 16):
        a("v_add_f32 v16, v16, v%d" % i)
    wave_allreduce_add(a, 16, 17)
    a("v_mul_f32 v16, 0x3b000000, v16")
    a("v_sub_f32 v18, v8, v16")
    a("v_mul_f32 v19, v18, v18")
    for i in range(9, 16):
        a("v_sub_f32 v18, v%d, v16" % i)
        a("v_fmac_f32 v19, v18, v18")
    wave_allreduce_add(a, 19, 17)
    a("v_mul_f32 v19, 0x3b000000, v19")
    bf16r(a, 16, 16)
    bf16r(a, 19, 19)
    a("v_add_f32 v19, 0x3727c5ac, v19")
    bf16r(a, 19, 19)
    a("v_sqrt_f32 v19, v19")
    a("s_nop 0")
    bf16r(a, 19, 19)
    a("v_rcp_f32 v20, v19")
    a("s_nop 0")
    for i in range(8):
        r = 8 + i
        a("v_sub_f32 v%d, v%d, v16" % (r, r))
        bf16r(a, r, r)
        a("v_mul_f32 v21, v%d, v20" % r)
        a("v_fma_f32 v22, -v21, v19, v%d" % r)
        a("v_fma_f32 v%d, v22, v20, v21" % r)
    for i in range(4):
        a("v_cvt_pk_bf16_f32 v%d, v%d, v%d" % (4 + i, 8 + 2 * i, 9 + 2 * i))
    a("v_lshrrev_b32 v20, 2, v2")
    a("v_lshlrev_b32 v20, 17, v20")
    a("v_lshl_add_u32 v20, v1, 6, v20")
    a("v_and_b32 v21, 3, v2")
    a("v_lshl_add_u32 v20, v21, 4, v20")
    a("buffer_store_dwordx4 v[4:7], v20, s[12:15], 0 offen")
    a.label("ln_fin")
    stamp_exit(a, "ln")
    a.label("ln_done")
    a("s_endpgm")
    return kernel_desc(name, 24, 0, 102)


def gen_k1(a):
    name = "proj_kernel"
    kernel_begin(a, name)
    stamp_entry(a)
    NKT = 16
    STAGE = 32768
    a("s_and_b32 s16, s2, 31")
    a("s_lshr_b32 s17, s2, 5")
    a("s_cmp_ge_u32 s16, 30")
    a("s_cbranch_scc1 k1_done")
    a("s_cmp_ge_u32 s17, 8")
    a("s_cbranch_scc1 k1_done")
    a("s_load_dwordx2 s[4:5], s[0:1], 24")
    a("s_load_dwordx4 s[8:11], s[0:1], 48")
    a("s_load_dwordx2 s[6:7], s[0:1], 88")
    a("v_lshrrev_b32 v1, 6, v0")
    a("v_and_b32 v0, 63, v0")
    a("s_nop 0")
    a("v_readfirstlane_b32 s18, v1")
    a("s_waitcnt lgkmcnt(0)")
    srd(a, 20, 6, 7, 2048 * 512 * 2)
    a("s_lshr_b32 s37, s18, 1")
    a("s_cmp_lt_u32 s16, 16")
    a("s_cselect_b32 s35, 1, 0")
    a("s_cbranch_scc0 k1_selgu")
    a("s_lshl_b32 s38, s16, 9")
    a("s_lshl_b32 s39, s37, 8")
    a("s_add_u32 s38, s38, s39")
    a("s_add_u32 s40, s4, s38")
    a("s_addc_u32 s41, s5, 0")
    a("s_mov_b32 s42, 8192")
    a("s_mov_b32 s43, 0x%x" % (512 * 8192))
    a("s_sub_u32 s43, s43, s38")
    a("s_branch k1_seldone")
    a.label("k1_selgu")
    a("s_sub_u32 s38, s16, 16")
    a("s_lshl_b32 s38, s38, 8")
    a("s_cmp_eq_u32 s37, 0")
    a("s_cselect_b32 s40, s8, s10")
    a("s_cselect_b32 s41, s9, s11")
    a("s_add_u32 s40, s40, s38")
    a("s_addc_u32 s41, s41, 0")
    a("s_mov_b32 s42, 3584")
    a("s_mov_b32 s43, 0x%x" % (512 * 3584))
    a("s_sub_u32 s43, s43, s38")
    a.label("k1_seldone")
    a("s_mov_b32 s24, s40")
    a("s_and_b32 s25, s41, 0xffff")
    a("s_mov_b32 s26, s43")
    a("s_mov_b32 s27, 0x00020000")
    a("s_lshl_b32 s30, s42, 5")
    a("s_and_b32 s38, s18, 1")
    a("s_lshl_b32 s39, s38, 4")
    a("s_mul_i32 s29, s39, s42")
    a("s_lshl_b32 s28, s17, 14")
    a("s_lshl_b32 s39, s18, 12")
    a("s_add_u32 s28, s28, s39")
    a("s_lshl_b32 s31, s18, 12")
    a("s_lshl_b32 s32, s37, 13")
    a("s_lshl_b32 s39, s38, 12")
    a("s_add_u32 s32, s32, s39")
    a("s_add_u32 s32, s32, 16384")
    a("v_lshrrev_b32 v1, 2, v0")
    a("v_and_b32 v2, 3, v0")
    a("v_lshrrev_b32 v3, 4, v0")
    a("v_and_b32 v4, 3, v3")
    a("v_xor_b32 v2, v2, v4")
    a("v_lshlrev_b32 v2, 4, v2")
    a("v_lshl_add_u32 v2, v1, 6, v2")
    for j in range(4):
        a("v_mov_b32 v%d, v2" % (200 + j))
    a("v_and_b32 v1, 15, v0")
    a("v_lshlrev_b32 v4, 2, v3")
    a("v_xor_b32 v1, v1, v4")
    a("v_lshlrev_b32 v1, 4, v1")
    a("v_mul_lo_u32 v4, v3, s42")
    a("v_add_u32 v1, v1, v4")
    a("s_lshl_b32 s39, s42, 2")
    a("s_sub_u32 s39, s39, 1024")
    a("v_mov_b32 v204, v1")
    for j in range(1, 4):
        a("v_add_u32 v%d, s39, v%d" % (204 + j, 204 + j - 1))
    a("s_lshr_b32 s44, s18, 1")
    a("s_and_b32 s45, s18, 1")
    a("v_and_b32 v1, 31, v0")
    a("v_lshrrev_b32 v2, 5, v0")
    a("v_lshrrev_b32 v3, 2, v0")
    a("v_and_b32 v3, 3, v3")
    a("v_xor_b32 v4, v2, v3")
    a("v_xor_b32 v5, 2, v4")
    a("s_lshl_b32 s39, s44, 13")
    a("v_lshlrev_b32 v1, 6, v1")
    a("v_add_u32 v1, s39, v1")
    a("v_lshl_add_u32 v208, v4, 4, v1")
    a("v_lshl_add_u32 v209, v5, 4, v1")
    a("v_lshrrev_b32 v1, 4, v0")
    a("v_and_b32 v1, 1, v1")
    a("v_and_b32 v3, 15, v0")
    a("v_lshrrev_b32 v3, 2, v3")
    a("v_and_b32 v4, 3, v0")
    a("v_lshrrev_b32 v5, 1, v4")
    a("v_lshl_add_u32 v5, v1, 1, v5")
    a("s_lshl_b32 s39, s45, 3")
    a("v_add_u32 v5, s39, v5")
    a("v_lshlrev_b32 v6, 2, v3")
    a("v_xor_b32 v7, v5, v6")
    a("v_xor_b32 v8, 4, v7")
    a("v_lshl_add_u32 v9, v2, 3, v3")
    a("v_lshlrev_b32 v9, 8, v9")
    a("v_and_b32 v4, 1, v4")
    a("v_lshl_add_u32 v9, v4, 3, v9")
    a("v_add_u32 v9, 0x4000, v9")
    a("v_lshl_add_u32 v210, v7, 4, v9")
    a("v_lshl_add_u32 v211, v8, 4, v9")
    a("v_mov_b32 v212, v0")
    for i in range(256):
        a("v_accvgpr_write_b32 a%d, 0" % i)

    def dma_tile():
        ins = []
        ins.append("s_add_u32 m0, s31, s33")
        for j in range(4):
            ins.append("buffer_load_dwordx4 v%d, s[20:23], s28 offen offset:%d lds" % (200 + j, j * 1024))
        ins.append("s_add_u32 m0, s32, s33")
        for j in range(4):
            ins.append("buffer_load_dwordx4 v%d, s[24:27], s29 offen offset:%d lds" % (204 + j, j * 1024))
        ins.append("s_add_u32 s28, s28, 0x20000")
        ins.append("s_add_u32 s29, s29, s30")
        ins.append("s_add_u32 s33, s33, 0x%x" % STAGE)
        ins.append("s_and_b32 s33, s33, 0x1ffff")
        return ins

    a("s_mov_b32 s33, 0")
    for _ in range(3):
        prev = None
        for ins in dma_tile():
            if prev is not None and prev.startswith("s_add_u32 m0") and ins.startswith("buffer"):
                a("s_nop 0")
            a(ins)
            prev = ins
    a("s_waitcnt vmcnt(8)")
    a("s_barrier")

    def frag_reads(setn, ks):
        base = setn * 32
        ins = []
        for rt in range(4):
            ins.append("ds_read_b128 v[%d:%d], v%d offset:%d" % (base + 16 + rt * 4, base + 19 + rt * 4,
                                                                  208 + ks, rt * 2048))
        for nt in range(4):
            sub, t = nt >> 1, nt & 1
            for p in range(2):
                off = sub * 8192 + ks * 4096 + p * 1024
                r0 = base + nt * 4 + p * 2
                ins.append("ds_read_b64_tr_b16 v[%d:%d], v%d offset:%d" % (r0, r0 + 1, 210 + t, off))
        order = [ins[0], ins[4], ins[5], ins[1], ins[6], ins[7], ins[2], ins[8], ins[9], ins[3], ins[10], ins[11]]
        return order

    for ins in frag_reads(0, 0):
        a(ins)
    a("s_mov_b32 s34, 0")
    a("s_mov_b32 s48, 0x%x" % STAGE)
    a("s_mov_b32 s49, 0x%x" % ((-3 * STAGE) & 0xffffffff))
    a("s_mov_b32 s46, 0")
    a.label("k1_loop")
    for ks in range(2):
        setn = ks
        fill = []
        if ks == 0:
            fill += frag_reads(1, 1)
            fill += dma_tile()
        else:
            upd = ["s_add_u32 s46, s46, 1",
                   "s_and_b32 s46, s46, 3",
                   "s_cmp_eq_u32 s46, 0",
                   "s_cselect_b32 s36, s49, s48"]
            for r in (208, 209, 210, 211):
                upd.append("v_add_u32 v%d, s36, v%d" % (r, r))
            fill += upd
            fill += frag_reads(0, 0)
        a("s_waitcnt lgkmcnt(0)")
        mf = []
        for nt in range(4):
            for rt in range(4):
                acc = (nt * 4 + rt) * 16
                mf.append("v_mfma_f32_32x32x16_bf16 a[%d:%d], v[%d:%d], v[%d:%d], a[%d:%d]" % (
                    acc, acc + 15, setn * 32 + nt * 4, setn * 32 + nt * 4 + 3,
                    setn * 32 + 16 + rt * 4, setn * 32 + 19 + rt * 4, acc, acc + 15))
        fi = 0
        for mi, m in enumerate(mf):
            a(m)
            remaining_m = len(mf) - mi
            n = -(-(len(fill) - fi) // max(remaining_m - 3, 1)) if fi < len(fill) else 0
            n = min(n, 3)
            for _ in range(n):
                if fi < len(fill):
                    ins = fill[fi]
                    a(ins)
                    if ins.startswith("s_add_u32 m0"):
                        a("s_nop 0")
                    fi += 1
        while fi < len(fill):
            a(fill[fi])
            if fill[fi].startswith("s_add_u32 m0"):
                a("s_nop 0")
            fi += 1
    a("s_waitcnt vmcnt(8)")
    a("s_barrier")
    a("s_add_u32 s34, s34, 1")
    a("s_cmp_lt_u32 s34, %d" % NKT)
    a("s_cbranch_scc1 k1_loop")
    a("s_waitcnt vmcnt(0) lgkmcnt(0)")
    a("s_nop 15")
    a("s_nop 7")
    a("v_mov_b32 v0, v212")
    a("v_and_b32 v1, 31, v0")
    a("v_lshrrev_b32 v2, 5, v0")
    a("s_lshl_b32 s38, s17, 8")
    a("s_lshl_b32 s39, s44, 7")
    a("s_add_u32 s38, s38, s39")
    a("v_add_u32 v1, s38, v1")
    a("s_cmp_eq_u32 s35, 0")
    a("s_cbranch_scc1 k1_epi_gu")
    add64(a, 40, 6, 7, WS_Q)
    srd(a, 24, 40, 41, 2048 * 4096 * 2)
    a("v_lshlrev_b32 v3, 8, v1")
    a("s_lshl_b32 s38, s16, 20")
    a("s_lshl_b32 s39, s45, 7")
    a("s_add_u32 s38, s38, s39")
    a("v_lshl_add_u32 v3, v2, 4, v3")
    a("v_add_u32 v3, s38, v3")
    a("v_add_u32 v4, 0x80000, v3")
    for rt in range(4):
        for nt in range(4):
            sub, t = nt >> 1, nt & 1
            acc = (nt * 4 + rt) * 16
            for pr in range(2):
                for i in range(8):
                    a("v_accvgpr_read_b32 v%d, a%d" % (8 + i, acc + pr * 8 + i))
                for i in range(8):
                    a("v_mul_f32 v%d, 0x3e0293ee, v%d" % (8 + i, 8 + i))
                for i in range(4):
                    a("v_cvt_pk_bf16_f32 v%d, v%d, v%d" % (16 + i, 8 + 2 * i, 9 + 2 * i))
                a("s_nop 1")
                a("v_permlane32_swap_b32 v16, v18")
                a("v_permlane32_swap_b32 v17, v19")
                off = t * 64 + pr * 32
                a("buffer_store_dwordx4 v[16:19], v%d, s[24:27], 0 offen offset:%d" % (3 + sub, off))
                a("s_nop 1")
        if rt < 3:
            a("v_add_u32 v3, 0x%x, v3" % (32 * 256))
            a("v_add_u32 v4, 0x%x, v4" % (32 * 256))
    a("s_branch k1_fin")
    a.label("k1_epi_gu")
    add64(a, 40, 6, 7, WS_H)
    srd(a, 24, 40, 41, 2048 * 1792 * 2)
    a("v_lshlrev_b32 v3, 8, v1")
    a("s_sub_u32 s38, s16, 16")
    a("s_lshl_b32 s38, s38, 19")
    a("s_lshl_b32 s39, s45, 7")
    a("s_add_u32 s38, s38, s39")
    a("v_lshl_add_u32 v3, v2, 4, v3")
    a("v_add_u32 v3, s38, v3")
    a("s_mov_b32 s46, 0x3d372713")
    a("s_mov_b32 s47, 0xc0135761")
    for rt in range(4):
        for t in range(2):
            accg = (t * 4 + rt) * 16
            accu = ((2 + t) * 4 + rt) * 16
            for pr in range(2):
                for i in range(8):
                    g, u, z = 8 + i, 24 + i, 32 + i
                    a("v_accvgpr_read_b32 v%d, a%d" % (g, accg + pr * 8 + i))
                    a("v_accvgpr_read_b32 v%d, a%d" % (u, accu + pr * 8 + i))
                for i in range(8):
                    g, u, z = 8 + i, 24 + i, 32 + i
                    bf16r(a, g, g)
                    bf16r(a, u, u)
                    a("v_mul_f32 v%d, v%d, v%d" % (z, g, g))
                    a("v_fma_f32 v%d, v%d, s46, 1.0" % (z, z))
                    a("v_mul_f32 v%d, v%d, v%d" % (z, z, g))
                    a("v_mul_f32 v%d, s47, v%d" % (z, z))
                    a("v_exp_f32 v%d, v%d" % (z, z))
                for i in range(8):
                    g, u, z = 8 + i, 24 + i, 32 + i
                    a("v_add_f32 v%d, 1.0, v%d" % (z, z))
                    a("v_rcp_f32 v%d, v%d" % (z, z))
                for i in range(8):
                    g, u, z = 8 + i, 24 + i, 32 + i
                    a("v_mul_f32 v%d, v%d, v%d" % (g, g, z))
                    bf16r(a, g, g)
                    a("v_mul_f32 v%d, v%d, v%d" % (g, g, u))
                for i in range(4):
                    a("v_cvt_pk_bf16_f32 v%d, v%d, v%d" % (16 + i, 8 + 2 * i, 9 + 2 * i))
                a("s_nop 1")
                a("v_permlane32_swap_b32 v16, v18")
                a("v_permlane32_swap_b32 v17, v19")
                off = t * 64 + pr * 32
                a("buffer_store_dwordx4 v[16:19], v3, s[24:27], 0 offen offset:%d" % off)
                a("s_nop 1")
        if rt < 3:
            a("v_add_u32 v3, 0x%x, v3" % (32 * 256))
    a.label("k1_fin")
    stamp_exit(a, "k1")
    a.label("k1_done")
    a("s_endpgm")
    return kernel_desc(name, 256, 256)


def gen_attn(a):
    name = "attn_kernel"
    kernel_begin(a, name)
    stamp_entry(a)
    TLOG = 60
    A_O, A_Q, A_F = 0, 128, 192
    V_S, V_P, V_T, V_TS, V_L, V_MC, V_KA, V_VA, V_KD, V_VD = 0, 64, 96, 104, 108, 110, 112, 120, 124, 128
    V_X = 130
    V_LANE = 140
    V_NM = 144

    a("s_cmp_ge_u32 s2, 256")
    a("s_cbranch_scc1 at_done")
    a("s_load_dwordx4 s[4:7], s[0:1], 8")
    a("s_load_dwordx2 s[8:9], s[0:1], 88")
    a("s_and_b32 s38, s2, 7")
    a("s_lshr_b32 s39, s2, 3")
    a("s_and_b32 s40, s39, 3")
    a("s_lshl_b32 s16, s38, 2")
    a("s_add_u32 s16, s16, s40")
    a("s_lshr_b32 s17, s39, 2")
    a("v_lshrrev_b32 v1, 6, v0")
    a("v_and_b32 v%d, 63, v0" % V_LANE)
    a("v_mov_b32 v0, v%d" % V_LANE)
    a("s_nop 0")
    a("v_readfirstlane_b32 s18, v1")
    a("s_waitcnt lgkmcnt(0)")
    srd(a, 20, 4, 5, 32 * 2048 * 128 * 2)
    srd(a, 24, 6, 7, 32 * 2048 * 128 * 2)
    a("s_lshl_b32 s28, s16, 19")
    a("s_lshl_b32 s38, s18, 12")
    a("s_add_u32 s28, s28, s38")
    a("s_mov_b32 s29, s28")
    a("s_mov_b32 s31, s38")
    a("s_add_u32 s32, s38, 0x10000")
    a("s_mov_b32 s36, 0x3e0293ee")
    a("s_mov_b32 s37, 0x%x" % ((127 + TLOG) << 23))
    a("s_mov_b32 s48, 0x4000")
    a("s_mov_b32 s49, 0x%x" % ((-3 * 16384) & 0xffffffff))
    a("v_lshrrev_b32 v1, 4, v0")
    a("v_and_b32 v2, 15, v0")
    for j in range(4):
        a("v_add_u32 v3, %d, v1" % (4 * j))
        a("v_xor_b32 v3, v2, v3")
        a("v_lshlrev_b32 v3, 4, v3")
        a("v_lshl_add_u32 v%d, v1, 8, v3" % (V_KD + j))
    a("v_lshlrev_b32 v3, 2, v1")
    a("v_xor_b32 v3, v2, v3")
    a("v_lshlrev_b32 v3, 4, v3")
    a("v_lshl_add_u32 v%d, v1, 8, v3" % V_VD)
    a("v_and_b32 v1, 31, v0")
    a("v_lshrrev_b32 v2, 5, v0")
    a("v_and_b32 v3, 15, v0")
    a("v_lshlrev_b32 v4, 8, v1")
    for ds in range(8):
        a("v_add_u32 v5, %d, v2" % (2 * ds))
        a("v_xor_b32 v5, v5, v3")
        a("v_lshl_add_u32 v%d, v5, 4, v4" % (V_KA + ds))
    a("v_lshrrev_b32 v1, 4, v0")
    a("v_and_b32 v1, 1, v1")
    a("v_lshrrev_b32 v3, 2, v3")
    a("v_and_b32 v4, 3, v0")
    a("v_lshrrev_b32 v5, 1, v4")
    a("v_lshl_add_u32 v5, v1, 1, v5")
    a("v_lshl_add_u32 v6, v2, 2, v3")
    a("v_lshlrev_b32 v6, 8, v6")
    a("v_and_b32 v4, 1, v4")
    a("v_lshl_add_u32 v6, v4, 3, v6")
    a("v_add_u32 v6, 0x1c000, v6")
    for dt in range(4):
        a("v_xor_b32 v7, %d, v3" % dt)
        a("v_lshl_add_u32 v7, v7, 2, v5")
        a("v_lshl_add_u32 v%d, v7, 4, v6" % (V_VA + dt))

    def dma(which):
        ins = []
        if which == "K":
            ins.append("s_add_u32 m0, s31, s33")
            for j in range(4):
                ins.append("buffer_load_dwordx4 v%d, s[20:23], s28 offen offset:%d lds" % (V_KD + j, j * 1024))
            ins.append("s_add_u32 s28, s28, 0x4000")
            ins.append("s_add_u32 s33, s33, 0x4000")
            ins.append("s_and_b32 s33, s33, 0xffff")
        else:
            ins.append("s_add_u32 m0, s32, s34")
            for j in range(4):
                ins.append("buffer_load_dwordx4 v%d, s[24:27], s29 offen offset:%d lds" % (V_VD, j * 1024))
            ins.append("s_add_u32 s29, s29, 0x4000")
            ins.append("s_add_u32 s34, s34, 0x4000")
            ins.append("s_and_b32 s34, s34, 0xffff")
        return ins

    def emit_list(lst):
        for ins in lst:
            a(ins)
            if ins.startswith("s_add_u32 m0"):
                a("s_nop 0")

    a("s_mov_b32 s33, 0")
    a("s_mov_b32 s34, 0xc000")
    for _ in range(3):
        emit_list(dma("K"))
    emit_list(dma("V"))
    a("s_sub_u32 s29, s29, 0x4000")
    emit_list(dma("V"))
    emit_list(dma("V"))
    add64(a, 40, 8, 9, WS_Q)
    srd(a, 44, 40, 41, 2048 * 4096 * 2)
    a("v_and_b32 v1, 31, v0")
    a("s_lshl_b32 s38, s17, 8")
    a("s_lshl_b32 s39, s18, 6")
    a("s_add_u32 s38, s38, s39")
    a("v_add_u32 v1, s38, v1")
    a("v_lshlrev_b32 v1, 8, v1")
    a("v_lshl_add_u32 v1, v2, 4, v1")
    a("s_lshl_b32 s38, s16, 19")
    a("v_add_u32 v%d, s38, v1" % (V_X + 8))
    a("v_add_u32 v%d, 0x2000, v%d" % (V_X + 9, V_X + 8))
    for qt in range(2):
        for ds in range(8):
            r = A_Q + (qt * 8 + ds) * 4
            a("buffer_load_dwordx4 a[%d:%d], v%d, s[44:47], 0 offen offset:%d" % (r, r + 3, V_X + 8 + qt, ds * 32))
    for i in range(128):
        a("v_accvgpr_write_b32 a%d, 0" % (A_O + i))
    for i in range(16):
        a("v_mov_b32 v%d, 0" % (V_P + 16 + i))
    a("v_mov_b32 v%d, 0" % V_L)
    a("v_mov_b32 v%d, 0" % (V_L + 1))
    a("v_mov_b32 v%d, 0xff800000" % V_MC)
    a("v_mov_b32 v%d, 0xff800000" % (V_MC + 1))
    a("s_waitcnt vmcnt(0)")
    a("s_barrier")

    def kread(slot, ds, half):
        r = A_F + slot * 4
        return "ds_read_b128 a[%d:%d], v%d offset:%d" % (r, r + 3, V_KA + ds, half * 8192)

    def vread(slot, dt, ks, half):
        r = A_F + slot * 4
        return ["ds_read_b64_tr_b16 a[%d:%d], v%d offset:%d" % (
            r + 2 * p, r + 2 * p + 1, V_VA + dt, (32 * half + 16 * ks + 8 * p) * 256) for p in range(2)]

    def qk_mfma(slot, nb, qt, ds, czero=False):
        d = V_S + (nb * 2 + qt) * 16
        r = A_F + slot * 4
        q = A_Q + (qt * 8 + ds) * 4
        if ds == 0:
            c = "0" if czero else "v[%d:%d]" % (V_NM + qt * 16, V_NM + qt * 16 + 15)
        else:
            c = "v[%d:%d]" % (d, d + 15)
        return "v_mfma_f32_32x32x16_bf16 v[%d:%d], a[%d:%d], a[%d:%d], %s" % (d, d + 15, r, r + 3, q, q + 3, c)

    def pv_mfma(slot, pb, qt, dt, ks):
        o = A_O + (qt * 4 + dt) * 16
        r = A_F + slot * 4
        p = V_P + (pb * 2 + qt) * 8 + ks * 4
        return "v_mfma_f32_32x32x16_bf16 a[%d:%d], a[%d:%d], v[%d:%d], a[%d:%d]" % (o, o + 15, r, r + 3, p, p + 3, o, o + 15)

    for ds in range(8):
        a(kread(ds % 4, ds, 0))
        if ds % 4 == 3:
            a("s_waitcnt lgkmcnt(0)")
            for d2 in range(ds - 3, ds + 1):
                for qt in range(2):
                    a(qk_mfma(d2 % 4, 0, qt, d2, czero=True))
            a("s_nop 7")
    a("s_nop 15")
    for qt in range(2):
        s0 = V_S + qt * 16
        x = V_X
        a("v_max3_f32 v%d, v%d, v%d, v%d" % (x, s0, s0 + 1, s0 + 2))
        for i in range(3, 15, 2):
            a("v_max3_f32 v%d, v%d, v%d, v%d" % (x, x, s0 + i, s0 + i + 1))
        a("v_max_f32 v%d, v%d, v%d" % (x, x, s0 + 15))
        a("v_mov_b32 v%d, v%d" % (x + 1, x))
        a("s_nop 1")
        a("v_permlane32_swap_b32 v%d, v%d" % (x, x + 1))
        a("s_nop 1")
        a("v_max_f32 v%d, v%d, v%d" % (x, x, x + 1))
        for i in range(16):
            a("v_sub_f32 v%d, v%d, v%d" % (s0 + i, s0 + i, x))
            a("v_sub_f32 v%d, 0, v%d" % (V_NM + qt * 16 + i, x))
    for p in range(3):
        a(kread(p, p, 1))

    def softmax_fill(b, first_ts_mov=True):
        st = []
        np_ = 16
        def regs(k):
            qt, kk = k // 8, k % 8
            s0 = V_S + (b * 2 + qt) * 16 + 2 * kk
            t0 = V_T + (k % 4) * 2
            return qt, kk, s0, t0
        def B(k):
            qt, kk, s0, t0 = regs(k)
            return ["v_exp_f32 v%d, v%d" % (t0, s0), "v_exp_f32 v%d, v%d" % (t0 + 1, s0 + 1)]
        def C(k):
            qt, kk, s0, t0 = regs(k)
            ta, tb = V_TS + qt * 2, V_TS + qt * 2 + 1
            if kk == 0:
                o = ["v_mov_b32 v%d, v%d" % (ta, t0), "v_mov_b32 v%d, v%d" % (tb, t0 + 1)]
            else:
                o = ["v_add_f32 v%d, v%d, v%d" % (ta, ta, t0), "v_add_f32 v%d, v%d, v%d" % (tb, tb, t0 + 1)]
            o.append("v_cvt_pk_bf16_f32 v%d, v%d, v%d" % (V_P + (b * 2 + qt) * 8 + kk, t0, t0 + 1))
            return o
        st += B(0) + B(1)
        for k in range(np_):
            if k + 2 < np_:
                st += B(k + 2)
            st += C(k)
        return st

    if "att_stamp" in OPT:
        a("s_memtime s[64:65]")
        a("s_memrealtime s[66:67]")
        a("s_waitcnt lgkmcnt(0)")
    a("s_mov_b32 s35, 0")
    a("s_mov_b32 s46, 0")
    a("s_mov_b32 s47, 3")
    a.label("at_loop")
    for step in range(2):
        b = step
        nb = 1 - b
        khalf = 1 - step
        vhalf = 1 - step
        valu = softmax_fill(b)
        extra = {p: [] for p in range(16)}
        if step == 0:
            d = dma("K")
            extra[1] += d[0:2]
            extra[2] += d[2:3]
            extra[3] += d[3:4]
            extra[4] += d[4:]
            upd = ["s_add_u32 s46, s46, 1", "s_and_b32 s46, s46, 3", "s_cmp_eq_u32 s46, 0",
                   "s_cselect_b32 s50, s49, s48"]
            extra[8] += upd + ["v_add_u32 v%d, s50, v%d" % (V_KA + i, V_KA + i) for i in range(4)]
            extra[9] += ["v_add_u32 v%d, s50, v%d" % (V_KA + i, V_KA + i) for i in range(4, 8)]
        else:
            d = dma("V")
            extra[1] += d[0:2]
            extra[2] += d[2:3]
            extra[3] += d[3:4]
            extra[4] += d[4:]
            upd = ["s_add_u32 s47, s47, 1", "s_and_b32 s47, s47, 3", "s_cmp_eq_u32 s47, 0",
                   "s_cselect_b32 s50, s49, s48"]
            extra[0] += upd + ["v_add_u32 v%d, s50, v%d" % (V_VA + i, V_VA + i) for i in range(4)]
        if "att_nodma" in OPT:
            for p in range(16):
                extra[p] = [x for x in extra[p] if not x.startswith("buffer_load")]
        if "att_novalu" in OPT:
            valu = valu[-6:]
        nvalu = len(valu)
        vi = 0

        def cost(ins):
            if ins.startswith("v_exp"):
                return 8
            if ins.startswith("buffer_load"):
                return DMA_COST
            return 4

        def nops(pp):
            return 1 if (pp % 16) < 8 else 2

        gaps = []
        for p in range(16):
            for qt in range(2):
                fixed = []
                if qt == 0:
                    pp = p + 3
                    if pp < 8:
                        fixed.append(kread(pp % 4, pp, khalf))
                    elif pp < 16:
                        fixed += vread(pp % 4, (pp - 8) >> 1, (pp - 8) & 1, vhalf)
                    else:
                        fixed.append(kread(pp % 4, pp - 16, step))
                else:
                    fixed += extra[p]
                    if p < 15:
                        fixed.append("s_waitcnt lgkmcnt(%d)" % (nops(p + 2) + nops(p + 3)))
                gaps.append(fixed)
        total = sum(cost(x) for g in gaps for x in g) + sum(cost(x) for x in valu)
        tgt_per = total / 31.0
        cum = 0
        a("s_waitcnt lgkmcnt(%d)" % (nops(1) + nops(2)))
        for gi, fixed in enumerate(gaps):
            p, qt = gi >> 1, gi & 1
            slot = p % 4
            if p < 8:
                a(qk_mfma(slot, nb, qt, p))
            else:
                a(pv_mfma(slot, nb, qt, (p - 8) >> 1, (p - 8) & 1))
            wait = [x for x in fixed if x.startswith("s_waitcnt")]
            pre = [x for x in fixed if not x.startswith("s_waitcnt")]
            emit_list(pre)
            cum += sum(cost(x) for x in fixed)
            while vi < nvalu and cum + cost(valu[vi]) * 0.5 <= tgt_per * (gi + 1):
                a(valu[vi])
                cum += cost(valu[vi])
                vi += 1
            emit_list(wait)
        while vi < nvalu:
            a(valu[vi])
            vi += 1
        a("v_add_f32 v%d, v%d, v%d" % (V_TS, V_TS, V_TS + 1))
        a("v_add_f32 v%d, v%d, v%d" % (V_TS + 2, V_TS + 2, V_TS + 3))
        a("v_max_f32 v%d, v%d, v%d" % (V_X, V_TS, V_TS + 2))
        a("v_cmp_nge_f32 vcc, s37, v%d" % V_X)
        if "att_noslow" not in OPT:
            a("s_cbranch_vccnz at_slow%d" % b)
        a.label("at_back%d" % b)
        a("v_add_f32 v%d, v%d, v%d" % (V_L, V_L, V_TS))
        a("v_add_f32 v%d, v%d, v%d" % (V_L + 1, V_L + 1, V_TS + 2))
    a("s_waitcnt vmcnt(8)")
    if "att_nobar" not in OPT:
        a("s_barrier")
    a("s_add_u32 s35, s35, 1")
    a("s_cmp_lt_u32 s35, 32")
    a("s_cbranch_scc1 at_loop")
    a("s_waitcnt lgkmcnt(0)")
    if "att_stamp" in OPT:
        a("s_memtime s[68:69]")
        a("s_memrealtime s[70:71]")
        a("s_load_dwordx2 s[72:73], s[0:1], 80")
        a("s_waitcnt lgkmcnt(0)")
        a("s_sub_u32 s68, s68, s64")
        a("s_sub_u32 s70, s70, s66")
        a("s_mov_b32 s76, s72")
        a("s_and_b32 s77, s73, 0xffff")
        a("s_mov_b32 s78, 256")
        a("s_mov_b32 s79, 0x00020000")
        a("s_lshl_b32 s74, s2, 2")
        a("s_add_u32 s74, s74, s18")
        a("s_cmp_lt_u32 s74, 32")
        a("s_cbranch_scc0 at_nostamp")
        a("s_lshl_b32 s74, s74, 3")
        a("v_mov_b32 v%d, s68" % (V_X + 2))
        a("v_mov_b32 v%d, s70" % (V_X + 3))
        a("v_mov_b32 v%d, s74" % (V_X + 4))
        a("s_nop 4")
        a("buffer_store_dwordx2 v[%d:%d], v%d, s[76:79], 0 offen" % (V_X + 2, V_X + 3, V_X + 4))
        a.label("at_nostamp")
    for grp in range(2):
        for pp in range(4):
            p = grp * 4 + pp
            for ins in vread(pp, p >> 1, p & 1, 1):
                a(ins)
        a("s_waitcnt lgkmcnt(0)")
        for pp in range(4):
            p = grp * 4 + pp
            for qt in range(2):
                a(pv_mfma(pp, 1, qt, p >> 1, p & 1))
        a("s_nop 7")
    a("s_nop 15")
    add64(a, 40, 8, 9, WS_O)
    srd(a, 44, 40, 41, 2048 * 4096 * 2)
    for qt in range(2):
        a("v_mov_b32 v%d, v%d" % (V_X, V_L + qt))
        a("s_nop 1")
        a("v_permlane32_swap_b32 v%d, v%d" % (V_L + qt, V_X))
        a("s_nop 1")
        a("v_add_f32 v%d, v%d, v%d" % (V_X, V_X, V_L + qt))
        a("v_rcp_f32 v%d, v%d" % (V_X + 1, V_X))
        a("s_nop 0")
        for dt in range(4):
            o = A_O + (qt * 4 + dt) * 16
            for pr in range(2):
                for i in range(8):
                    a("v_accvgpr_read_b32 v%d, a%d" % (8 + i, o + pr * 8 + i))
                for i in range(8):
                    a("v_mul_f32 v%d, v%d, v%d" % (8 + i, 8 + i, V_X + 1))
                for i in range(4):
                    a("v_cvt_pk_bf16_f32 v%d, v%d, v%d" % (16 + i, 8 + 2 * i, 9 + 2 * i))
                a("s_nop 1")
                a("v_permlane32_swap_b32 v16, v18")
                a("v_permlane32_swap_b32 v17, v19")
                a("buffer_store_dwordx4 v[16:19], v%d, s[44:47], 0 offen offset:%d" % (V_X + 8 + qt, dt * 64 + pr * 32))
                a("s_nop 1")
    a("s_branch at_fin")
    for b in range(2):
        a.label("at_slow%d" % b)
        a("s_nop 15")
        for qt in range(2):
            s0 = V_S + (b * 2 + qt) * 16
            x = V_X
            a("v_max3_f32 v%d, v%d, v%d, v%d" % (x, s0, s0 + 1, s0 + 2))
            for i in range(3, 15, 2):
                a("v_max3_f32 v%d, v%d, v%d, v%d" % (x, x, s0 + i, s0 + i + 1))
            a("v_max_f32 v%d, v%d, v%d" % (x, x, s0 + 15))
            a("v_mov_b32 v%d, v%d" % (x + 1, x))
            a("s_nop 1")
            a("v_permlane32_swap_b32 v%d, v%d" % (x, x + 1))
            a("s_nop 1")
            a("v_max_f32 v%d, v%d, v%d" % (x, x, x + 1))
            a("v_max_f32 v%d, 0, v%d" % (x, x))
            a("v_sub_f32 v%d, 0, v%d" % (x + 1, x))
            a("v_exp_f32 v%d, v%d" % (x + 1, x + 1))
            s1 = V_S + ((1 - b) * 2 + qt) * 16
            for i in range(16):
                a("v_sub_f32 v%d, v%d, v%d" % (s0 + i, s0 + i, x))
                a("v_sub_f32 v%d, v%d, v%d" % (s1 + i, s1 + i, x))
                a("v_sub_f32 v%d, v%d, v%d" % (V_NM + qt * 16 + i, V_NM + qt * 16 + i, x))
            a("v_mul_f32 v%d, v%d, v%d" % (V_L + qt, V_L + qt, x + 1))
            for blk in range(16):
                o = A_O + qt * 64 + blk * 4
                for i in range(4):
                    a("v_accvgpr_read_b32 v%d, a%d" % (x + 2 + i, o + i))
                for i in range(4):
                    a("v_mul_f32 v%d, v%d, v%d" % (x + 2 + i, x + 2 + i, x + 1))
                for i in range(4):
                    a("v_accvgpr_write_b32 a%d, v%d" % (o + i, x + 2 + i))
        for ins in softmax_fill(b):
            a(ins)
        a("v_add_f32 v%d, v%d, v%d" % (V_TS, V_TS, V_TS + 1))
        a("v_add_f32 v%d, v%d, v%d" % (V_TS + 2, V_TS + 2, V_TS + 3))
        a("s_nop 1")
        a("s_branch at_back%d" % b)
    a.label("at_fin")
    stamp_exit(a, "at")
    a.label("at_done")
    a("s_endpgm")
    return kernel_desc(name, 256, 256)


def gen_k3(a):
    name = "out_kernel"
    kernel_begin(a, name)
    stamp_entry(a)
    STAGE = 32768
    V_AD, V_BD, V_AD2 = 200, 204, 208
    V_XA, V_WA = 212, 214
    V_LANE = 216
    a("s_cmp_ge_u32 s2, 256")
    a("s_cbranch_scc1 k3_done")
    a("s_load_dwordx2 s[4:5], s[0:1], 0")
    a("s_load_dwordx2 s[6:7], s[0:1], 32")
    a("s_load_dwordx2 s[8:9], s[0:1], 64")
    a("s_load_dwordx2 s[10:11], s[0:1], 72")
    a("s_load_dwordx2 s[12:13], s[0:1], 88")
    a("s_and_b32 s38, s2, 7")
    a("s_lshr_b32 s39, s2, 3")
    a("s_and_b32 s40, s39, 3")
    a("s_lshl_b32 s16, s38, 2")
    a("s_add_u32 s16, s16, s40")
    a("s_lshr_b32 s17, s2, 5")
    a("v_lshrrev_b32 v1, 6, v0")
    a("v_and_b32 v0, 63, v0")
    a("v_mov_b32 v%d, v0" % V_LANE)
    a("s_nop 0")
    a("v_readfirstlane_b32 s18, v1")
    a("s_waitcnt lgkmcnt(0)")
    add64(a, 40, 12, 13, WS_O)
    srd(a, 20, 40, 41, 2048 * 4096 * 2)
    add64(a, 40, 12, 13, WS_H)
    srd(a, 52, 40, 41, 2048 * 1792 * 2)
    srd(a, 24, 6, 7, 4096 * 512 * 2)
    srd(a, 56, 8, 9, 1792 * 512 * 2)
    a("s_lshl_b32 s38, s16, 6")
    a("s_lshl_b32 s39, s18, 4")
    a("s_add_u32 s38, s38, s39")
    a("s_lshl_b32 s28, s38, 8")
    a("s_mov_b32 s60, s28")
    a("s_lshl_b32 s29, s18, 15")
    a("s_lshl_b32 s39, s17, 7")
    a("s_add_u32 s29, s29, s39")
    a("s_mov_b32 s61, s29")
    a("s_lshl_b32 s31, s18, 12")
    a("s_add_u32 s32, s31, 0x4000")
    a("s_mov_b32 s48, 0x%x" % STAGE)
    a("s_mov_b32 s49, 0x%x" % ((-(K3_R - 1) * STAGE) & 0xffffffff))
    a("v_lshrrev_b32 v1, 4, v0")
    a("v_and_b32 v2, 15, v0")
    a("s_mov_b32 s39, 3584")
    for j in range(4):
        a("v_add_u32 v3, %d, v1" % (4 * j))
        a("v_xor_b32 v4, v2, v3")
        a("v_lshlrev_b32 v4, 4, v4")
        a("v_lshl_add_u32 v%d, v1, 8, v4" % (V_AD + j))
    a("v_lshrrev_b32 v1, 3, v0")
    a("v_and_b32 v2, 7, v0")
    a("v_lshrrev_b32 v3, 4, v0")
    a("v_and_b32 v3, 1, v3")
    a("v_lshlrev_b32 v3, 2, v3")
    a("v_xor_b32 v2, v2, v3")
    a("v_lshlrev_b32 v2, 4, v2")
    a("v_lshl_add_u32 v2, v1, 10, v2")
    for j in range(4):
        a("v_add_u32 v%d, %d, v2" % (V_BD + j, 8 * j * 1024 - 1024 * j))
    a("v_and_b32 v1, 31, v0")
    a("v_lshrrev_b32 v2, 5, v0")
    a("v_and_b32 v3, 15, v0")
    a("v_lshlrev_b32 v4, 8, v1")
    a("s_lshl_b32 s38, s18, 1")
    a("v_add_u32 v5, s38, v2")
    a("v_xor_b32 v6, v5, v3")
    a("v_lshl_add_u32 v%d, v6, 4, v4" % V_XA)
    a("v_xor_b32 v6, 8, v6")
    a("v_lshl_add_u32 v%d, v6, 4, v4" % (V_XA + 1))
    a("v_lshrrev_b32 v1, 4, v0")
    a("v_and_b32 v1, 1, v1")
    a("v_lshrrev_b32 v3, 2, v3")
    a("v_and_b32 v4, 3, v0")
    a("v_lshrrev_b32 v5, 1, v4")
    a("v_lshl_add_u32 v5, v1, 1, v5")
    a("v_lshrrev_b32 v6, 1, v3")
    a("v_lshlrev_b32 v6, 2, v6")
    a("v_xor_b32 v5, v5, v6")
    a("v_xor_b32 v6, 4, v5")
    a("v_lshl_add_u32 v7, v2, 3, v3")
    a("s_lshl_b32 s38, s18, 4")
    a("v_add_u32 v7, s38, v7")
    a("v_lshlrev_b32 v7, 7, v7")
    a("v_and_b32 v4, 1, v4")
    a("v_lshl_add_u32 v7, v4, 3, v7")
    a("v_add_u32 v7, 0x4000, v7")
    a("v_lshl_add_u32 v%d, v5, 4, v7" % V_WA)
    a("v_lshl_add_u32 v%d, v6, 4, v7" % (V_WA + 1))
    for i in range(128):
        a("v_accvgpr_write_b32 a%d, 0" % i)

    cnt = [0]

    def dma_tile():
        ins = []
        n = cnt[0]
        cnt[0] += 1
        blk = ["s_cmp_eq_u32 s34, 32", "s_cbranch_scc0 k3_nosw%d" % n]
        for i in range(4):
            blk.append("s_mov_b32 s%d, s%d" % (20 + i, 52 + i))
            blk.append("s_mov_b32 s%d, s%d" % (24 + i, 56 + i))
        blk.append("s_mov_b32 s28, s60")
        blk.append("s_mov_b32 s29, s61")
        blk.append("LABEL k3_nosw%d" % n)
        ins.append("BLOCK " + "|".join(blk))
        ins.append("s_add_u32 m0, s31, s33")
        for j in range(4):
            ins.append("buffer_load_dwordx4 v%d, s[20:23], s28 offen offset:%d lds" % (V_AD + j, j * 1024))
        ins.append("s_add_u32 m0, s32, s33")
        for j in range(4):
            ins.append("buffer_load_dwordx4 v%d, s[24:27], s29 offen offset:%d lds" % (V_BD + j, j * 1024))
        ins.append("s_add_u32 s28, s28, 0x80000")
        ins.append("s_add_u32 s29, s29, 0x20000")
        ins.append("s_add_u32 s33, s33, 0x%x" % STAGE)
        ins.append("s_cmp_eq_u32 s33, 0x%x" % (STAGE * K3_R))
        ins.append("s_cselect_b32 s33, 0, s33")
        ins.append("s_add_u32 s34, s34, 1")
        return ins

    def emit1(ins):
        if ins.startswith("BLOCK "):
            for x in ins[6:].split("|"):
                emit1(x)
        elif ins.startswith("LABEL "):
            a.label(ins[6:])
        else:
            a(ins)
            if ins.startswith("s_add_u32 m0"):
                a("s_nop 0")

    a("s_mov_b32 s33, 0")
    a("s_mov_b32 s34, 0")
    for _ in range(K3_R - 1):
        for ins in dma_tile():
            emit1(ins)

    def frag_reads(setn, kk):
        base = setn * 16
        ins = []
        for rt in range(2):
            ins.append("ds_read_b128 v[%d:%d], v%d offset:%d" % (base + 8 + rt * 4, base + 11 + rt * 4, V_XA + kk, rt * 8192))
        for nt in range(2):
            for p in range(2):
                r0 = base + nt * 4 + p * 2
                ins.append("ds_read_b64_tr_b16 v[%d:%d], v%d offset:%d" % (r0, r0 + 1, V_WA + nt, kk * 8192 + p * 512))
        return [ins[0], ins[2], ins[3], ins[1], ins[4], ins[5]]

    a("s_mov_b32 s46, 0")

    def frag_reads2(par):
        base = par * 32
        out = []
        for kk in range(2):
            b = base + kk * 16
            ins = []
            for rt in range(2):
                ins.append("ds_read_b128 v[%d:%d], v%d offset:%d" % (b + 8 + rt * 4, b + 11 + rt * 4, V_XA + kk, rt * 8192))
            for nt in range(2):
                for p in range(2):
                    r0 = b + nt * 4 + p * 2
                    ins.append("ds_read_b64_tr_b16 v[%d:%d], v%d offset:%d" % (r0, r0 + 1, V_WA + nt, kk * 8192 + p * 512))
            out += [ins[0], ins[2], ins[3], ins[1], ins[4], ins[5]]
        return out

    def mfmas(par, phase):
        out = []
        for kk in range(2):
            for nt in range(2):
                for rt in range(2):
                    acc = phase * 64 + (nt * 2 + rt) * 16
                    b = par * 32 + kk * 16
                    out.append("v_mfma_f32_32x32x16_bf16 a[%d:%d], v[%d:%d], v[%d:%d], a[%d:%d]" % (
                        acc, acc + 15, b + nt * 4, b + nt * 4 + 3, b + 8 + rt * 4, b + 11 + rt * 4, acc, acc + 15))
        return out

    adv = ["s_add_u32 s46, s46, 1", "s_cmp_eq_u32 s46, %d" % K3_R, "s_cselect_b32 s50, s49, s48",
           "s_cselect_b32 s46, 0, s46"] + ["v_add_u32 v%d, s50, v%d" % (r, r) for r in (V_XA, V_XA + 1, V_WA, V_WA + 1)]

    def body(par, mphase):
        a("s_waitcnt vmcnt(%d) lgkmcnt(0)" % (8 * (K3_R - 2)))
        a("s_barrier")
        rd = frag_reads2(par)
        mf = mfmas(1 - par, mphase) if mphase is not None else []
        dm = dma_tile()
        for ins in rd[:6]:
            a(ins)
        mi = 0
        ri = 6
        for ins in dm:
            emit1(ins)
            if ins.startswith("buffer_load"):
                if mi < len(mf):
                    a(mf[mi])
                    mi += 1
                if ri < len(rd):
                    a(rd[ri])
                    ri += 1
        for ins in adv:
            a(ins)

    body(0, None)
    a("s_mov_b32 s35, 0")
    a.label("k3_loop0")
    body(1, 0)
    body(0, 0)
    a("s_add_u32 s35, s35, 1")
    a("s_cmp_lt_u32 s35, 16")
    a("s_cbranch_scc1 k3_loop0")
    a("s_mov_b32 s35, 0")
    a.label("k3_loop1")
    body(1, 1)
    body(0, 1)
    a("s_add_u32 s35, s35, 1")
    a("s_cmp_lt_u32 s35, 7")
    a("s_cbranch_scc1 k3_loop1")
    a("s_waitcnt vmcnt(0) lgkmcnt(0)")
    a("s_barrier")
    a("s_nop 15")
    a("v_mov_b32 v0, v%d" % V_LANE)
    a("v_lshlrev_b32 v1, 2, v0")
    a("s_lshl_b32 s38, s18, 15")
    a("v_add_u32 v1, s38, v1")
    for ph in range(2):
        for tile in range(4):
            for i in range(16):
                if i % 4 == 0:
                    for ii in range(4):
                        a("v_accvgpr_read_b32 v%d, a%d" % (8 + ii, ph * 64 + tile * 16 + i + ii))
                a("ds_write_b32 v1, v%d offset:%d" % (8 + i % 4, (ph * 4 + tile) * 4096 + i * 256))
    a("s_waitcnt lgkmcnt(0)")
    a("s_barrier")
    a("v_lshlrev_b32 v1, 2, v0")
    a("s_lshl_b32 s38, s18, 12")
    a("v_add_u32 v1, s38, v1")
    a("v_add_u32 v2, 0x10000, v1")
    for ph in range(2):
        for src in range(4):
            for i in range(16):
                a("ds_read_b32 v%d, v%d offset:%d" % (64 + src * 16 + i, 1 + (src >> 1), (src & 1) * 32768 + ph * 16384 + i * 256))
        a("s_waitcnt lgkmcnt(0)")
        for i in range(16):
            d = 32 + ph * 16 + i
            a("v_add_f32 v%d, v%d, v%d" % (d, 64 + i, 80 + i))
            a("v_add_f32 v%d, v%d, v%d" % (96 + i, 96 + i, 112 + i))
            a("v_add_f32 v%d, v%d, v%d" % (d, d, 96 + i))
    srd(a, 20, 4, 5, 2048 * 512 * 2)
    srd(a, 24, 10, 11, 2048 * 512 * 2)
    a("v_and_b32 v1, 31, v0")
    a("v_lshrrev_b32 v2, 5, v0")
    a("s_and_b32 s38, s18, 1")
    a("s_lshl_b32 s38, s38, 5")
    a("s_lshl_b32 s39, s16, 6")
    a("s_add_u32 s38, s38, s39")
    a("v_add_u32 v1, s38, v1")
    a("v_lshlrev_b32 v1, 10, v1")
    a("s_lshr_b32 s38, s18, 1")
    a("s_lshl_b32 s38, s38, 6")
    a("s_lshl_b32 s39, s17, 7")
    a("s_add_u32 s38, s38, s39")
    a("v_add_u32 v1, s38, v1")
    a("v_lshl_add_u32 v3, v2, 3, v1")
    a("v_lshl_add_u32 v4, v2, 4, v1")
    for q in range(4):
        a("buffer_load_dwordx2 v[%d:%d], v3, s[20:23], 0 offen offset:%d" % (64 + 2 * q, 65 + 2 * q, q * 16))
    if DEBUG_K3:
        add64(a, 40, 12, 13, 64 << 20)
        srd(a, 44, 40, 41, 16 << 20)
        a("v_lshlrev_b32 v5, 1, v3")
        for q in range(4):
            a("buffer_store_dwordx4 v[%d:%d], v5, s[44:47], 0 offen offset:%d" % (32 + 4 * q, 35 + 4 * q, q * 32))
        a("v_add_u32 v5, 0x800000, v5")
        for q in range(4):
            a("buffer_store_dwordx4 v[%d:%d], v5, s[44:47], 0 offen offset:%d" % (48 + 4 * q, 51 + 4 * q, q * 32))
        a("s_waitcnt vmcnt(0)")
    a("s_mov_b32 s38, 0xbfb8aa3b")
    for i in range(16):
        sv, fv, z = 32 + i, 48 + i, 80 + i
        bf16r(a, sv, sv)
        bf16r(a, fv, fv)
        a("v_mul_f32 v%d, s38, v%d" % (z, fv))
        a("v_exp_f32 v%d, v%d" % (z, z))
    for i in range(16):
        z = 80 + i
        a("v_add_f32 v%d, 1.0, v%d" % (z, z))
        a("v_rcp_f32 v%d, v%d" % (z, z))
    for i in range(16):
        sv, fv, z = 32 + i, 48 + i, 80 + i
        a("v_mul_f32 v%d, v%d, v%d" % (fv, fv, z))
        bf16r(a, fv, fv)
        a("v_mul_f32 v%d, v%d, v%d" % (sv, sv, fv))
        bf16r(a, sv, sv)
    a("s_waitcnt vmcnt(0)")
    for q in range(4):
        for hh in range(2):
            xr = 64 + 2 * q + hh
            a("v_lshlrev_b32 v96, 16, v%d" % xr)
            a("v_and_b32 v97, 0xffff0000, v%d" % xr)
            a("v_add_f32 v96, v96, v%d" % (32 + 4 * q + 2 * hh))
            a("v_add_f32 v97, v97, v%d" % (33 + 4 * q + 2 * hh))
            a("v_cvt_pk_bf16_f32 v%d, v96, v97" % (100 + 2 * q + hh))
    a("s_nop 1")
    for pr in range(2):
        b = 100 + 4 * pr
        a("v_permlane32_swap_b32 v%d, v%d" % (b, b + 2))
        a("v_permlane32_swap_b32 v%d, v%d" % (b + 1, b + 3))
        a("buffer_store_dwordx4 v[%d:%d], v4, s[24:27], 0 offen offset:%d" % (b, b + 3, pr * 32))
    a.label("k3_fin")
    stamp_exit(a, "k3")
    a.label("k3_done")
    a("s_endpgm")
    return kernel_desc(name, 220, 128)


def main():
    a = Asm()
    descs = []
    launches = []
    descs.append(gen_ln(a))
    launches.append("; @launch kernel=ln_kernel grid=(512,1,1) block=(256,1,1) lds=0")
    descs.append(gen_k1(a))
    launches.append("; @launch kernel=proj_kernel grid=(256,1,1) block=(256,1,1) lds=131072")
    descs.append(gen_attn(a))
    launches.append("; @launch kernel=attn_kernel grid=(256,1,1) block=(256,1,1) lds=131072")
    descs.append(gen_k3(a))
    launches.append("; @launch kernel=out_kernel grid=(256,1,1) block=(256,1,1) lds=%d" % max(131072, 32768 * K3_R))
    out = HEADER + "\n".join(launches) + "\n"
    out += '.amdgcn_target "amdgcn-amd-amdhsa--gfx950"\n.text\n'
    out += a.text()
    out += '.section .rodata,"a"\n'
    for d in descs:
        out += ".p2align 6\n" + d
    path = sys.argv[1] if len(sys.argv) > 1 else "cdna_kernels/%s.s" % NAME
    open(path, "w").write(out)


if __name__ == "__main__":
    main()
```

```python
import sys, os
BAR = os.environ.get("BAR")
from gen import Asm, kernel_begin, kernel_desc, srd, HEADER

def gen(mode, path, pat="lin"):
    a = Asm()
    kernel_begin(a, "bw_kernel")
    a("s_cmp_ge_u32 s2, 256")
    a("s_cbranch_scc1 bw_done")
    a("s_load_dwordx2 s[6:7], s[0:1], 88")
    a("v_lshrrev_b32 v1, 6, v0")
    a("v_and_b32 v0, 63, v0")
    a("s_nop 0")
    a("v_readfirstlane_b32 s18, v1")
    a("s_waitcnt lgkmcnt(0)")
    srd(a, 20, 6, 7, 64 << 20)
    a("s_and_b32 s3, s2, 7")
    a("s_mul_i32 s28, s3, 0x300000")
    a("s_lshr_b32 s3, s2, 3")
    a("s_and_b32 s3, s3, 3")
    a("s_mul_i32 s3, s3, 0xc0000")
    a("s_add_u32 s28, s28, s3")
    a("s_lshl_b32 s3, s18, 13")
    a("s_add_u32 s28, s28, s3")
    a("v_lshlrev_b32 v1, 4, v0")
    if pat in ("swz16", "swz4", "swz1"):
        a("v_lshrrev_b32 v3, 4, v0")
        a("v_and_b32 v4, 15, v0")
        if pat == "swz16":
            a("v_lshl_add_u32 v5, v3, 0, 5")
        elif pat == "swz4":
            a("v_lshlrev_b32 v5, 2, v3")
        else:
            a("v_and_b32 v5, 1, v3")
        a("v_xor_b32 v4, v4, v5")
        a("v_lshlrev_b32 v4, 4, v4")
        a("v_lshl_add_u32 v1, v3, 8, v4")
    if pat == "b128":
        a("v_lshrrev_b32 v3, 3, v0")
        a("v_and_b32 v4, 7, v0")
        a("v_lshlrev_b32 v4, 4, v4")
        a("v_lshl_add_u32 v1, v3, 10, v4")
    if pat == "b256":
        a("v_lshrrev_b32 v3, 4, v0")
        a("v_and_b32 v4, 15, v0")
        a("v_lshlrev_b32 v4, 4, v4")
        a("v_lshl_add_u32 v1, v3, 10, v4")
    a("s_lshl_b32 s31, s18, 13")
    a("s_mov_b32 s35, 0")
    a("s_mov_b32 s33, 0")
    a.label("bw_loop")
    if mode in ("dma", "mix"):
        a("s_add_u32 m0, s31, s33")
        a("s_nop 0")
    for j in range(8):
        if mode == "dma" or (mode == "mix" and j < 4):
            if j == 4:
                pass
            a("buffer_load_dwordx4 v1, s[20:23], s28 offen offset:%d lds" % ((j % 4) * 1024) if j < 4 else
              "buffer_load_dwordx4 v2, s[20:23], s28 offen offset:%d lds" % ((j % 4) * 1024))
        else:
            a("buffer_load_dwordx4 v[%d:%d], v%d, s[20:23], s28 offen offset:%d" % (8 + 4 * j, 11 + 4 * j, 1 if j < 4 else 2, (j % 4) * 1024))
        if j == 3:
            a("v_add_u32 v2, 0x1000, v1")
            if mode == "dma":
                a("s_add_u32 s34, s31, s33")
                a("s_add_u32 m0, s34, 0x1000")
                a("s_nop 0")
    a("s_add_u32 s28, s28, 0x8000")
    a("s_add_u32 s33, s33, 0x8000")
    a("s_and_b32 s33, s33, 0x1ffff")
    a("s_waitcnt vmcnt(16)")
    if BAR:
        a("s_barrier")
    a("s_add_u32 s35, s35, 1")
    a("s_cmp_lt_u32 s35, 46")
    a("s_cbranch_scc1 bw_loop")
    a("s_waitcnt vmcnt(0)")
    a.label("bw_done")
    a("s_endpgm")
    d = kernel_desc("bw_kernel", 64, 0)
    out = HEADER + "; @launch kernel=bw_kernel grid=(256,1,1) block=(256,1,1) lds=131072\n"
    out += '.amdgcn_target "amdgcn-amd-amdhsa--gfx950"\n.text\n' + a.text() + '.section .rodata,"a"\n.p2align 6\n' + d
    open(path, "w").write(out)

for m in ("dma", "reg"):
    for pat in ("lin", "swz16", "swz4", "swz1"):
        gen(m, "var/bw_%s_%s.s" % (m, pat), pat)
```

```python
import os
import sys

OPT = set(os.environ.get("GENOPT", "").split(","))

NAME = "recurrent_scan__mha_block_cached__glu_gated_geglu__prompt"

WS_XN = 0
WS_Q = 4 << 20
WS_H = 48 << 20
WS_W = 56 << 20
WS_P = 64 << 20
WS_O = 32 << 20
DMA_COST = 12
STF = os.environ.get("STF", "")
K3_R = int(os.environ.get("K3_R", "5"))
DEBUG_K3 = False

HEADER = """; Kernarg layout for this problem (96 bytes, ptrs only, base s[0:1]):
"""


class Asm:
    def __init__(self):
        self.lines = []

    def __call__(self, s):
        self.lines.append("    " + s)

    def label(self, l):
        self.lines.append(l + ":")

    def raw(self, s):
        self.lines.append(s)

    def text(self):
        return "\n".join(self.lines) + "\n"


def kernel_begin(a, name):
    a.raw(".globl %s" % name)
    a.raw(".p2align 8")
    a.raw(".type %s,@function" % name)
    a.label(name)


def kernel_desc(name, nvgpr, nagpr, nsgpr=102):
    acc_off = (nvgpr + 3) // 4 * 4
    total = acc_off + nagpr if nagpr else nvgpr
    return """.amdhsa_kernel %s
  .amdhsa_next_free_vgpr %d
  .amdhsa_next_free_sgpr %d
  .amdhsa_accum_offset %d
  .amdhsa_group_segment_fixed_size 0
  .amdhsa_kernarg_size 96
  .amdhsa_user_sgpr_count 2
  .amdhsa_user_sgpr_kernarg_segment_ptr 1
  .amdhsa_system_sgpr_workgroup_id_x 1
.end_amdhsa_kernel
""" % (name, total, nsgpr, acc_off)


def srd(a, d, lo, hi, nbytes):
    a("s_mov_b32 s%d, s%d" % (d, lo))
    a("s_and_b32 s%d, s%d, 0xffff" % (d + 1, hi))
    a("s_mov_b32 s%d, 0x%x" % (d + 2, nbytes))
    a("s_mov_b32 s%d, 0x00020000" % (d + 3))


def add64(a, dlo, lo, hi, imm):
    a("s_add_u32 s%d, s%d, 0x%x" % (dlo, lo, imm))
    a("s_addc_u32 s%d, s%d, 0" % (dlo + 1, hi))


def bf16r(a, dst, src, tmp=None):
    a("v_cvt_pk_bf16_f32 v%d, v%d, v%d" % (dst, src, src))
    a("v_lshlrev_b32 v%d, 16, v%d" % (dst, dst))


def stamp_entry(a):
    if "stamp" not in OPT:
        return
    a("s_memrealtime s[90:91]")
    a("s_mov_b32 s80, 0")
    a("s_mov_b32 s82, 0")


def stamp_mark(a, n):
    if "stamp" not in OPT:
        return
    a("s_memrealtime s[%d:%d]" % (80 + 2 * n, 81 + 2 * n))
    a("s_waitcnt lgkmcnt(0)")


def stamp_exit(a, tag):
    if "stamp" not in OPT:
        return
    a("s_waitcnt vmcnt(0) lgkmcnt(0)")
    a("s_memrealtime s[92:93]")
    a("s_load_dwordx2 s[94:95], s[0:1], 88")
    a("s_waitcnt lgkmcnt(0)")
    a("s_add_u32 s94, s94, 0x%x" % ((200 << 20) + 256 * ["ln", "k1", "at", "k3", "k4"].index(tag)))
    a("s_addc_u32 s95, s95, 0")
    a("s_and_b32 s88, s2, 63")
    a("s_cmp_eq_u32 s88, 0")
    a("s_cbranch_scc0 %s_nost" % tag)
    a("s_lshr_b32 s88, s2, 6")
    a("s_lshl_b32 s88, s88, 4")
    a("s_add_u32 s88, s88, 128")
    a("s_mov_b32 s96, s94")
    a("s_and_b32 s97, s95, 0xffff")
    a("s_mov_b32 s98, 256")
    a("s_mov_b32 s99, 0x00020000")
    a("v_mov_b32 v4, s90")
    a("v_mov_b32 v5, s80")
    a("v_mov_b32 v6, s82")
    a("v_mov_b32 v7, s92")
    a("v_mov_b32 v2, s88")
    a("s_mov_b64 exec, 1")
    a("s_nop 4")
    a("buffer_store_dwordx4 v[4:7], v2, s[96:99], 0 offen")
    a("s_waitcnt vmcnt(0)")
    a.label("%s_nost" % tag)

LANE_REG = {}

def wave_allreduce_add(a, v, t):
    for off in (0x041F, 0x081F, 0x101F, 0x201F, 0x401F):
        a("ds_swizzle_b32 v%d, v%d offset:0x%04X" % (t, v, off))
        a("s_waitcnt lgkmcnt(0)")
        a("v_add_f32 v%d, v%d, v%d" % (v, v, t))
    a("v_mov_b32 v%d, v%d" % (t, v))
    a("s_nop 1")
    a("v_permlane32_swap_b32 v%d, v%d" % (v, t))
    a("s_nop 1")
    a("v_add_f32 v%d, v%d, v%d" % (v, v, t))


def gen_ln(a):
    name = "ln_kernel"
    kernel_begin(a, name)
    stamp_entry(a)
    a("s_cmp_ge_u32 s2, 512")
    a("s_cbranch_scc1 ln_done")
    a("s_load_dwordx2 s[4:5], s[0:1], 0")
    a("s_load_dwordx2 s[6:7], s[0:1], 88")
    a("v_lshrrev_b32 v1, 6, v0")
    a("v_and_b32 v2, 63, v0")
    a("s_lshl_b32 s3, s2, 2")
    a("v_add_u32 v1, s3, v1")
    a("v_lshlrev_b32 v3, 10, v1")
    a("v_lshl_add_u32 v3, v2, 4, v3")
    a("s_waitcnt lgkmcnt(0)")
    srd(a, 8, 4, 5, 2048 * 512 * 2)
    srd(a, 12, 6, 7, 2048 * 512 * 2)
    a("buffer_load_dwordx4 v[4:7], v3, s[8:11], 0 offen")
    a("s_waitcnt vmcnt(0)")
    for i in range(4):
        a("v_lshlrev_b32 v%d, 16, v%d" % (8 + 2 * i, 4 + i))
        a("v_and_b32 v%d, 0xffff0000, v%d" % (9 + 2 * i, 4 + i))
    a("v_add_f32 v16, v8, v9")
    for i in range(10, 16):
        a("v_add_f32 v16, v16, v%d" % i)
    wave_allreduce_add(a, 16, 17)
    a("v_mul_f32 v16, 0x3b000000, v16")
    a("v_sub_f32 v18, v8, v16")
    a("v_mul_f32 v19, v18, v18")
    for i in range(9, 16):
        a("v_sub_f32 v18, v%d, v16" % i)
        a("v_fmac_f32 v19, v18, v18")
    wave_allreduce_add(a, 19, 17)
    a("v_mul_f32 v19, 0x3b000000, v19")
    bf16r(a, 16, 16)
    bf16r(a, 19, 19)
    a("v_add_f32 v19, 0x3727c5ac, v19")
    bf16r(a, 19, 19)
    a("v_sqrt_f32 v19, v19")
    a("s_nop 0")
    bf16r(a, 19, 19)
    a("v_rcp_f32 v20, v19")
    a("s_nop 0")
    for i in range(8):
        r = 8 + i
        a("v_sub_f32 v%d, v%d, v16" % (r, r))
        bf16r(a, r, r)
        a("v_mul_f32 v21, v%d, v20" % r)
        a("v_fma_f32 v22, -v21, v19, v%d" % r)
        a("v_fma_f32 v%d, v22, v20, v21" % r)
    for i in range(4):
        a("v_cvt_pk_bf16_f32 v%d, v%d, v%d" % (4 + i, 8 + 2 * i, 9 + 2 * i))
    a("v_lshrrev_b32 v20, 2, v2")
    a("v_lshlrev_b32 v20, 17, v20")
    a("v_lshl_add_u32 v20, v1, 6, v20")
    a("v_and_b32 v21, 3, v2")
    a("v_lshl_add_u32 v20, v21, 4, v20")
    a("buffer_store_dwordx4 v[4:7], v20, s[12:15], 0 offen")
    a.label("ln_fin")
    stamp_exit(a, "ln")
    a.label("ln_done")
    a("s_endpgm")
    return kernel_desc(name, 24, 0, 102)


def gen_k1(a):
    name = "proj_kernel"
    kernel_begin(a, name)
    stamp_entry(a)
    NKT = 16
    STAGE = 32768
    a("s_and_b32 s16, s2, 31")
    a("s_lshr_b32 s17, s2, 5")
    a("s_cmp_ge_u32 s17, 8")
    a("s_cbranch_scc1 k1_done")
    a("s_cmp_ge_u32 s16, 30")
    a("s_cbranch_scc1 k1_relayout")
    a("s_load_dwordx2 s[4:5], s[0:1], 24")
    a("s_load_dwordx4 s[8:11], s[0:1], 48")
    a("s_load_dwordx2 s[6:7], s[0:1], 88")
    a("v_lshrrev_b32 v1, 6, v0")
    a("v_and_b32 v0, 63, v0")
    a("s_nop 0")
    a("v_readfirstlane_b32 s18, v1")
    a("s_waitcnt lgkmcnt(0)")
    srd(a, 20, 6, 7, 2048 * 512 * 2)
    a("s_lshr_b32 s37, s18, 1")
    a("s_cmp_lt_u32 s16, 16")
    a("s_cselect_b32 s35, 1, 0")
    a("s_cbranch_scc0 k1_selgu")
    a("s_lshl_b32 s38, s16, 9")
    a("s_lshl_b32 s39, s37, 8")
    a("s_add_u32 s38, s38, s39")
    a("s_add_u32 s40, s4, s38")
    a("s_addc_u32 s41, s5, 0")
    a("s_mov_b32 s42, 8192")
    a("s_mov_b32 s43, 0x%x" % (512 * 8192))
    a("s_sub_u32 s43, s43, s38")
    a("s_branch k1_seldone")
    a.label("k1_selgu")
    a("s_sub_u32 s38, s16, 16")
    a("s_lshl_b32 s38, s38, 8")
    a("s_cmp_eq_u32 s37, 0")
    a("s_cselect_b32 s40, s8, s10")
    a("s_cselect_b32 s41, s9, s11")
    a("s_add_u32 s40, s40, s38")
    a("s_addc_u32 s41, s41, 0")
    a("s_mov_b32 s42, 3584")
    a("s_mov_b32 s43, 0x%x" % (512 * 3584))
    a("s_sub_u32 s43, s43, s38")
    a.label("k1_seldone")
    a("s_mov_b32 s24, s40")
    a("s_and_b32 s25, s41, 0xffff")
    a("s_mov_b32 s26, s43")
    a("s_mov_b32 s27, 0x00020000")
    a("s_lshl_b32 s30, s42, 5")
    a("s_and_b32 s38, s18, 1")
    a("s_lshl_b32 s39, s38, 4")
    a("s_mul_i32 s29, s39, s42")
    a("s_lshl_b32 s28, s17, 14")
    a("s_lshl_b32 s39, s18, 12")
    a("s_add_u32 s28, s28, s39")
    a("s_lshl_b32 s31, s18, 12")
    a("s_lshl_b32 s32, s37, 13")
    a("s_lshl_b32 s39, s38, 12")
    a("s_add_u32 s32, s32, s39")
    a("s_add_u32 s32, s32, 16384")
    a("v_lshrrev_b32 v1, 2, v0")
    a("v_and_b32 v2, 3, v0")
    a("v_lshrrev_b32 v3, 4, v0")
    a("v_and_b32 v4, 3, v3")
    a("v_xor_b32 v2, v2, v4")
    a("v_lshlrev_b32 v2, 4, v2")
    a("v_lshl_add_u32 v2, v1, 6, v2")
    for j in range(4):
        a("v_mov_b32 v%d, v2" % (200 + j))
    a("v_and_b32 v1, 15, v0")
    a("v_lshlrev_b32 v4, 2, v3")
    a("v_xor_b32 v1, v1, v4")
    a("v_lshlrev_b32 v1, 4, v1")
    a("v_mul_lo_u32 v4, v3, s42")
    a("v_add_u32 v1, v1, v4")
    a("s_lshl_b32 s39, s42, 2")
    a("s_sub_u32 s39, s39, 1024")
    a("v_mov_b32 v204, v1")
    for j in range(1, 4):
        a("v_add_u32 v%d, s39, v%d" % (204 + j, 204 + j - 1))
    a("s_lshr_b32 s44, s18, 1")
    a("s_and_b32 s45, s18, 1")
    a("v_and_b32 v1, 31, v0")
    a("v_lshrrev_b32 v2, 5, v0")
    a("v_lshrrev_b32 v3, 2, v0")
    a("v_and_b32 v3, 3, v3")
    a("v_xor_b32 v4, v2, v3")
    a("v_xor_b32 v5, 2, v4")
    a("s_lshl_b32 s39, s44, 13")
    a("v_lshlrev_b32 v1, 6, v1")
    a("v_add_u32 v1, s39, v1")
    a("v_lshl_add_u32 v208, v4, 4, v1")
    a("v_lshl_add_u32 v209, v5, 4, v1")
    a("v_lshrrev_b32 v1, 4, v0")
    a("v_and_b32 v1, 1, v1")
    a("v_and_b32 v3, 15, v0")
    a("v_lshrrev_b32 v3, 2, v3")
    a("v_and_b32 v4, 3, v0")
    a("v_lshrrev_b32 v5, 1, v4")
    a("v_lshl_add_u32 v5, v1, 1, v5")
    a("s_lshl_b32 s39, s45, 3")
    a("v_add_u32 v5, s39, v5")
    a("v_lshlrev_b32 v6, 2, v3")
    a("v_xor_b32 v7, v5, v6")
    a("v_xor_b32 v8, 4, v7")
    a("v_lshl_add_u32 v9, v2, 3, v3")
    a("v_lshlrev_b32 v9, 8, v9")
    a("v_and_b32 v4, 1, v4")
    a("v_lshl_add_u32 v9, v4, 3, v9")
    a("v_add_u32 v9, 0x4000, v9")
    a("v_lshl_add_u32 v210, v7, 4, v9")
    a("v_lshl_add_u32 v211, v8, 4, v9")
    a("v_mov_b32 v212, v0")
    for i in range(256):
        a("v_accvgpr_write_b32 a%d, 0" % i)

    def dma_tile():
        ins = []
        ins.append("s_add_u32 m0, s31, s33")
        for j in range(4):
            ins.append("buffer_load_dwordx4 v%d, s[20:23], s28 offen offset:%d lds" % (200 + j, j * 1024))
        ins.append("s_add_u32 m0, s32, s33")
        for j in range(4):
            ins.append("buffer_load_dwordx4 v%d, s[24:27], s29 offen offset:%d lds" % (204 + j, j * 1024))
        ins.append("s_add_u32 s28, s28, 0x20000")
        ins.append("s_add_u32 s29, s29, s30")
        ins.append("s_add_u32 s33, s33, 0x%x" % STAGE)
        ins.append("s_and_b32 s33, s33, 0x1ffff")
        return ins

    a("s_mov_b32 s33, 0")
    for _ in range(3):
        prev = None
        for ins in dma_tile():
            if prev is not None and prev.startswith("s_add_u32 m0") and ins.startswith("buffer"):
                a("s_nop 0")
            a(ins)
            prev = ins
    a("s_waitcnt vmcnt(8)")
    a("s_barrier")

    def frag_reads(setn, ks):
        base = setn * 32
        ins = []
        for rt in range(4):
            ins.append("ds_read_b128 v[%d:%d], v%d offset:%d" % (base + 16 + rt * 4, base + 19 + rt * 4,
                                                                  208 + ks, rt * 2048))
        for nt in range(4):
            sub, t = nt >> 1, nt & 1
            for p in range(2):
                off = sub * 8192 + ks * 4096 + p * 1024
                r0 = base + nt * 4 + p * 2
                ins.append("ds_read_b64_tr_b16 v[%d:%d], v%d offset:%d" % (r0, r0 + 1, 210 + t, off))
        order = [ins[0], ins[4], ins[5], ins[1], ins[6], ins[7], ins[2], ins[8], ins[9], ins[3], ins[10], ins[11]]
        return order

    for ins in frag_reads(0, 0):
        a(ins)
    a("s_mov_b32 s34, 0")
    a("s_mov_b32 s48, 0x%x" % STAGE)
    a("s_mov_b32 s49, 0x%x" % ((-3 * STAGE) & 0xffffffff))
    a("s_mov_b32 s46, 0")
    stamp_mark(a, 0)
    a.label("k1_loop")
    for ks in range(2):
        setn = ks
        fill = []
        if ks == 0:
            fill += frag_reads(1, 1)
            fill += dma_tile()
        else:
            upd = ["s_add_u32 s46, s46, 1",
                   "s_and_b32 s46, s46, 3",
                   "s_cmp_eq_u32 s46, 0",
                   "s_cselect_b32 s36, s49, s48"]
            for r in (208, 209, 210, 211):
                upd.append("v_add_u32 v%d, s36, v%d" % (r, r))
            fill += upd
            fill += frag_reads(0, 0)
        a("s_waitcnt lgkmcnt(0)")
        mf = []
        for nt in range(4):
            for rt in range(4):
                acc = (nt * 4 + rt) * 16
                mf.append("v_mfma_f32_32x32x16_bf16 a[%d:%d], v[%d:%d], v[%d:%d], a[%d:%d]" % (
                    acc, acc + 15, setn * 32 + nt * 4, setn * 32 + nt * 4 + 3,
                    setn * 32 + 16 + rt * 4, setn * 32 + 19 + rt * 4, acc, acc + 15))
        fi = 0
        for mi, m in enumerate(mf):
            a(m)
            remaining_m = len(mf) - mi
            n = -(-(len(fill) - fi) // max(remaining_m - 3, 1)) if fi < len(fill) else 0
            n = min(n, 3)
            for _ in range(n):
                if fi < len(fill):
                    ins = fill[fi]
                    a(ins)
                    if ins.startswith("s_add_u32 m0"):
                        a("s_nop 0")
                    fi += 1
        while fi < len(fill):
            a(fill[fi])
            if fill[fi].startswith("s_add_u32 m0"):
                a("s_nop 0")
            fi += 1
    a("s_waitcnt vmcnt(8)")
    a("s_barrier")
    a("s_add_u32 s34, s34, 1")
    a("s_cmp_lt_u32 s34, %d" % NKT)
    a("s_cbranch_scc1 k1_loop")
    stamp_mark(a, 1)
    a("s_waitcnt vmcnt(0) lgkmcnt(0)")
    a("s_nop 15")
    a("s_nop 7")
    a("v_mov_b32 v0, v212")
    a("v_and_b32 v1, 31, v0")
    a("v_lshrrev_b32 v2, 5, v0")
    a("s_lshl_b32 s38, s17, 8")
    a("s_lshl_b32 s39, s44, 7")
    a("s_add_u32 s38, s38, s39")
    a("v_add_u32 v1, s38, v1")
    a("s_cmp_eq_u32 s35, 0")
    a("s_cbranch_scc1 k1_epi_gu")
    add64(a, 40, 6, 7, WS_Q)
    srd(a, 24, 40, 41, 2048 * 4096 * 2)
    a("v_lshlrev_b32 v3, 8, v1")
    a("s_lshl_b32 s38, s16, 20")
    a("s_lshl_b32 s39, s45, 7")
    a("s_add_u32 s38, s38, s39")
    a("v_lshl_add_u32 v3, v2, 4, v3")
    a("v_add_u32 v3, s38, v3")
    a("v_add_u32 v4, 0x80000, v3")
    for rt in range(4):
        for nt in range(4):
            sub, t = nt >> 1, nt & 1
            acc = (nt * 4 + rt) * 16
            for pr in range(2):
                for i in range(8):
                    a("v_accvgpr_read_b32 v%d, a%d" % (8 + i, acc + pr * 8 + i))
                for i in range(8):
                    a("v_mul_f32 v%d, 0x3e0293ee, v%d" % (8 + i, 8 + i))
                for i in range(4):
                    a("v_cvt_pk_bf16_f32 v%d, v%d, v%d" % (16 + i, 8 + 2 * i, 9 + 2 * i))
                a("s_nop 1")
                a("v_permlane32_swap_b32 v16, v18")
                a("v_permlane32_swap_b32 v17, v19")
                off = t * 64 + pr * 32
                a("buffer_store_dwordx4 v[16:19], v%d, s[24:27], 0 offen offset:%d%s" % (3 + sub, off, STF))
                a("s_nop 1")
        if rt < 3:
            a("v_add_u32 v3, 0x%x, v3" % (32 * 256))
            a("v_add_u32 v4, 0x%x, v4" % (32 * 256))
    a("s_branch k1_fin")
    a.label("k1_epi_gu")
    add64(a, 40, 6, 7, WS_H)
    srd(a, 24, 40, 41, 2048 * 1792 * 2)
    a("v_lshlrev_b32 v3, 8, v1")
    a("s_sub_u32 s38, s16, 16")
    a("s_lshl_b32 s38, s38, 19")
    a("s_lshl_b32 s39, s45, 7")
    a("s_add_u32 s38, s38, s39")
    a("v_lshl_add_u32 v3, v2, 4, v3")
    a("v_add_u32 v3, s38, v3")
    a("s_mov_b32 s46, 0x3d372713")
    a("s_mov_b32 s47, 0xc0135761")
    for rt in range(4):
        for t in range(2):
            accg = (t * 4 + rt) * 16
            accu = ((2 + t) * 4 + rt) * 16
            for pr in range(2):
                for i in range(8):
                    g, u, z = 8 + i, 24 + i, 32 + i
                    a("v_accvgpr_read_b32 v%d, a%d" % (g, accg + pr * 8 + i))
                    a("v_accvgpr_read_b32 v%d, a%d" % (u, accu + pr * 8 + i))
                for i in range(8):
                    g, u, z = 8 + i, 24 + i, 32 + i
                    bf16r(a, g, g)
                    bf16r(a, u, u)
                    a("v_mul_f32 v%d, v%d, v%d" % (z, g, g))
                    a("v_fma_f32 v%d, v%d, s46, 1.0" % (z, z))
                    a("v_mul_f32 v%d, v%d, v%d" % (z, z, g))
                    a("v_mul_f32 v%d, s47, v%d" % (z, z))
                    a("v_exp_f32 v%d, v%d" % (z, z))
                for i in range(8):
                    g, u, z = 8 + i, 24 + i, 32 + i
                    a("v_add_f32 v%d, 1.0, v%d" % (z, z))
                    a("v_rcp_f32 v%d, v%d" % (z, z))
                for i in range(8):
                    g, u, z = 8 + i, 24 + i, 32 + i
                    a("v_mul_f32 v%d, v%d, v%d" % (g, g, z))
                    bf16r(a, g, g)
                    a("v_mul_f32 v%d, v%d, v%d" % (g, g, u))
                for i in range(4):
                    a("v_cvt_pk_bf16_f32 v%d, v%d, v%d" % (16 + i, 8 + 2 * i, 9 + 2 * i))
                a("s_nop 1")
                a("v_permlane32_swap_b32 v16, v18")
                a("v_permlane32_swap_b32 v17, v19")
                off = t * 64 + pr * 32
                a("buffer_store_dwordx4 v[16:19], v3, s[24:27], 0 offen offset:%d%s" % (off, STF))
                a("s_nop 1")
        if rt < 3:
            a("v_add_u32 v3, 0x%x, v3" % (32 * 256))
    a("s_branch k1_fin")
    a.label("k1_relayout")
    a("s_load_dwordx2 s[4:5], s[0:1], 32")
    a("s_load_dwordx2 s[8:9], s[0:1], 64")
    a("s_load_dwordx2 s[6:7], s[0:1], 88")
    a("v_lshrrev_b32 v1, 6, v0")
    a("v_and_b32 v0, 63, v0")
    a("s_nop 0")
    a("v_readfirstlane_b32 s18, v1")
    a("s_sub_u32 s38, s16, 30")
    a("s_lshl_b32 s39, s17, 1")
    a("s_add_u32 s38, s38, s39")
    a("s_lshl_b32 s38, s38, 2")
    a("s_add_u32 s38, s38, s18")
    a("s_mul_i32 s40, s38, 92")
    a("s_waitcnt lgkmcnt(0)")
    add64(a, 42, 6, 7, WS_W)
    srd(a, 28, 42, 43, 4 * 5888 * 256)
    a("s_and_b32 s5, s5, 0xffff")
    a("s_and_b32 s9, s9, 0xffff")
    a("v_lshlrev_b32 v1, 4, v0")
    a("v_lshrrev_b32 v2, 4, v0")
    a("s_mov_b32 s38, 0x%x" % (5888 * 256))
    a("v_mul_lo_u32 v2, v2, s38")
    a("v_and_b32 v3, 15, v0")
    a("v_lshl_add_u32 v2, v3, 4, v2")
    a("s_mov_b32 s41, 0")
    a("s_mov_b32 s47, 0x00020000")
    a("s_mov_b32 s49, 0x1c0000")
    a.label("k1_rl_loop")
    for u in range(23):
        a("s_add_u32 s38, s40, %d" % u)
        a("s_cmp_lt_u32 s38, 4096")
        a("s_cselect_b32 s44, s4, s8")
        a("s_cselect_b32 s45, s5, s9")
        a("s_cselect_b32 s39, 0, 0x1000")
        a("s_cselect_b32 s46, 0x400000, s49")
        a("s_sub_u32 s39, s38, s39")
        a("s_lshl_b32 s39, s39, 10")
        a("buffer_load_dwordx4 v[%d:%d], v1, s[44:47], s39 offen" % (8 + 4 * u, 11 + 4 * u))
    for u in range(23):
        a("s_add_u32 s38, s40, %d" % u)
        a("s_lshl_b32 s38, s38, 8")
        a("s_waitcnt vmcnt(%d)" % min(22, 22 - u + u))  if False else None
        a("s_waitcnt vmcnt(22)")
        a("buffer_store_dwordx4 v[%d:%d], v2, s[28:31], s38 offen" % (8 + 4 * u, 11 + 4 * u))
    a("s_waitcnt vmcnt(0)")
    a("s_add_u32 s40, s40, 23")
    a("s_add_u32 s41, s41, 1")
    a("s_cmp_lt_u32 s41, 4")
    a("s_cbranch_scc1 k1_rl_loop")
    a.label("k1_fin")
    stamp_exit(a, "k1")
    a.label("k1_done")
    a("s_endpgm")
    return kernel_desc(name, 256, 256)


def gen_attn(a):
    name = "attn_kernel"
    kernel_begin(a, name)
    stamp_entry(a)
    TLOG = 60
    A_O, A_Q, A_F = 0, 128, 192
    V_S, V_P, V_T, V_TS, V_L, V_MC, V_KA, V_VA, V_KD, V_VD = 0, 64, 96, 104, 108, 110, 112, 120, 124, 128
    V_X = 130
    V_LANE = 140
    V_NM = 144

    a("s_cmp_ge_u32 s2, 256")
    a("s_cbranch_scc1 at_done")
    a("s_load_dwordx4 s[4:7], s[0:1], 8")
    a("s_load_dwordx2 s[8:9], s[0:1], 88")
    a("s_and_b32 s38, s2, 7")
    a("s_lshr_b32 s39, s2, 3")
    a("s_and_b32 s40, s39, 3")
    a("s_lshl_b32 s16, s38, 2")
    a("s_add_u32 s16, s16, s40")
    a("s_lshr_b32 s17, s39, 2")
    a("v_lshrrev_b32 v1, 6, v0")
    a("v_and_b32 v%d, 63, v0" % V_LANE)
    a("v_mov_b32 v0, v%d" % V_LANE)
    a("s_nop 0")
    a("v_readfirstlane_b32 s18, v1")
    a("s_waitcnt lgkmcnt(0)")
    srd(a, 20, 4, 5, 32 * 2048 * 128 * 2)
    srd(a, 24, 6, 7, 32 * 2048 * 128 * 2)
    a("s_lshl_b32 s28, s16, 19")
    a("s_lshl_b32 s38, s18, 12")
    a("s_add_u32 s28, s28, s38")
    a("s_mov_b32 s29, s28")
    a("s_mov_b32 s31, s38")
    a("s_add_u32 s32, s38, 0x10000")
    a("s_mov_b32 s36, 0x3e0293ee")
    a("s_mov_b32 s37, 0x%x" % ((127 + TLOG) << 23))
    a("s_mov_b32 s48, 0x4000")
    a("s_mov_b32 s49, 0x%x" % ((-3 * 16384) & 0xffffffff))
    a("v_lshrrev_b32 v1, 4, v0")
    a("v_and_b32 v2, 15, v0")
    for j in range(4):
        a("v_add_u32 v3, %d, v1" % (4 * j))
        a("v_xor_b32 v3, v2, v3")
        a("v_lshlrev_b32 v3, 4, v3")
        a("v_lshl_add_u32 v%d, v1, 8, v3" % (V_KD + j))
    a("v_lshlrev_b32 v3, 2, v1")
    a("v_xor_b32 v3, v2, v3")
    a("v_lshlrev_b32 v3, 4, v3")
    a("v_lshl_add_u32 v%d, v1, 8, v3" % V_VD)
    a("v_and_b32 v1, 31, v0")
    a("v_lshrrev_b32 v2, 5, v0")
    a("v_and_b32 v3, 15, v0")
    a("v_lshlrev_b32 v4, 8, v1")
    for ds in range(8):
        a("v_add_u32 v5, %d, v2" % (2 * ds))
        a("v_xor_b32 v5, v5, v3")
        a("v_lshl_add_u32 v%d, v5, 4, v4" % (V_KA + ds))
    a("v_lshrrev_b32 v1, 4, v0")
    a("v_and_b32 v1, 1, v1")
    a("v_lshrrev_b32 v3, 2, v3")
    a("v_and_b32 v4, 3, v0")
    a("v_lshrrev_b32 v5, 1, v4")
    a("v_lshl_add_u32 v5, v1, 1, v5")
    a("v_lshl_add_u32 v6, v2, 2, v3")
    a("v_lshlrev_b32 v6, 8, v6")
    a("v_and_b32 v4, 1, v4")
    a("v_lshl_add_u32 v6, v4, 3, v6")
    a("v_add_u32 v6, 0x1c000, v6")
    for dt in range(4):
        a("v_xor_b32 v7, %d, v3" % dt)
        a("v_lshl_add_u32 v7, v7, 2, v5")
        a("v_lshl_add_u32 v%d, v7, 4, v6" % (V_VA + dt))

    def dma(which):
        ins = []
        if which == "K":
            ins.append("s_add_u32 m0, s31, s33")
            for j in range(4):
                ins.append("buffer_load_dwordx4 v%d, s[20:23], s28 offen offset:%d lds" % (V_KD + j, j * 1024))
            ins.append("s_add_u32 s28, s28, 0x4000")
            ins.append("s_add_u32 s33, s33, 0x4000")
            ins.append("s_and_b32 s33, s33, 0xffff")
        else:
            ins.append("s_add_u32 m0, s32, s34")
            for j in range(4):
                ins.append("buffer_load_dwordx4 v%d, s[24:27], s29 offen offset:%d lds" % (V_VD, j * 1024))
            ins.append("s_add_u32 s29, s29, 0x4000")
            ins.append("s_add_u32 s34, s34, 0x4000")
            ins.append("s_and_b32 s34, s34, 0xffff")
        return ins

    def emit_list(lst):
        for ins in lst:
            a(ins)
            if ins.startswith("s_add_u32 m0"):
                a("s_nop 0")

    a("s_mov_b32 s33, 0")
    a("s_mov_b32 s34, 0xc000")
    for _ in range(3):
        emit_list(dma("K"))
    emit_list(dma("V"))
    a("s_sub_u32 s29, s29, 0x4000")
    emit_list(dma("V"))
    emit_list(dma("V"))
    add64(a, 40, 8, 9, WS_Q)
    srd(a, 44, 40, 41, 2048 * 4096 * 2)
    a("v_and_b32 v1, 31, v0")
    a("s_lshl_b32 s38, s17, 8")
    a("s_lshl_b32 s39, s18, 6")
    a("s_add_u32 s38, s38, s39")
    a("v_add_u32 v1, s38, v1")
    a("v_lshlrev_b32 v1, 8, v1")
    a("v_lshl_add_u32 v1, v2, 4, v1")
    a("s_lshl_b32 s38, s16, 19")
    a("v_add_u32 v%d, s38, v1" % (V_X + 8))
    a("v_add_u32 v%d, 0x2000, v%d" % (V_X + 9, V_X + 8))
    for qt in range(2):
        for ds in range(8):
            r = A_Q + (qt * 8 + ds) * 4
            a("buffer_load_dwordx4 a[%d:%d], v%d, s[44:47], 0 offen offset:%d" % (r, r + 3, V_X + 8 + qt, ds * 32))
    for i in range(128):
        a("v_accvgpr_write_b32 a%d, 0" % (A_O + i))
    for i in range(16):
        a("v_mov_b32 v%d, 0" % (V_P + 16 + i))
    a("v_mov_b32 v%d, 0" % V_L)
    a("v_mov_b32 v%d, 0" % (V_L + 1))
    a("v_mov_b32 v%d, 0xff800000" % V_MC)
    a("v_mov_b32 v%d, 0xff800000" % (V_MC + 1))
    a("s_waitcnt vmcnt(0)")
    a("s_barrier")

    def kread(slot, ds, half):
        r = A_F + slot * 4
        return "ds_read_b128 a[%d:%d], v%d offset:%d" % (r, r + 3, V_KA + ds, half * 8192)

    def vread(slot, dt, ks, half):
        r = A_F + slot * 4
        return ["ds_read_b64_tr_b16 a[%d:%d], v%d offset:%d" % (
            r + 2 * p, r + 2 * p + 1, V_VA + dt, (32 * half + 16 * ks + 8 * p) * 256) for p in range(2)]

    def qk_mfma(slot, nb, qt, ds, czero=False):
        d = V_S + (nb * 2 + qt) * 16
        r = A_F + slot * 4
        q = A_Q + (qt * 8 + ds) * 4
        if ds == 0:
            c = "0" if czero else "v[%d:%d]" % (V_NM + qt * 16, V_NM + qt * 16 + 15)
        else:
            c = "v[%d:%d]" % (d, d + 15)
        return "v_mfma_f32_32x32x16_bf16 v[%d:%d], a[%d:%d], a[%d:%d], %s" % (d, d + 15, r, r + 3, q, q + 3, c)

    def pv_mfma(slot, pb, qt, dt, ks):
        o = A_O + (qt * 4 + dt) * 16
        r = A_F + slot * 4
        p = V_P + (pb * 2 + qt) * 8 + ks * 4
        return "v_mfma_f32_32x32x16_bf16 a[%d:%d], a[%d:%d], v[%d:%d], a[%d:%d]" % (o, o + 15, r, r + 3, p, p + 3, o, o + 15)

    for ds in range(8):
        a(kread(ds % 4, ds, 0))
        if ds % 4 == 3:
            a("s_waitcnt lgkmcnt(0)")
            for d2 in range(ds - 3, ds + 1):
                for qt in range(2):
                    a(qk_mfma(d2 % 4, 0, qt, d2, czero=True))
            a("s_nop 7")
    a("s_nop 15")
    for qt in range(2):
        s0 = V_S + qt * 16
        x = V_X
        a("v_max3_f32 v%d, v%d, v%d, v%d" % (x, s0, s0 + 1, s0 + 2))
        for i in range(3, 15, 2):
            a("v_max3_f32 v%d, v%d, v%d, v%d" % (x, x, s0 + i, s0 + i + 1))
        a("v_max_f32 v%d, v%d, v%d" % (x, x, s0 + 15))
        a("v_mov_b32 v%d, v%d" % (x + 1, x))
        a("s_nop 1")
        a("v_permlane32_swap_b32 v%d, v%d" % (x, x + 1))
        a("s_nop 1")
        a("v_max_f32 v%d, v%d, v%d" % (x, x, x + 1))
        for i in range(16):
            a("v_sub_f32 v%d, v%d, v%d" % (s0 + i, s0 + i, x))
            a("v_sub_f32 v%d, 0, v%d" % (V_NM + qt * 16 + i, x))
    for p in range(3):
        a(kread(p, p, 1))

    def softmax_fill(b, first_ts_mov=True):
        st = []
        np_ = 16
        def regs(k):
            qt, kk = k // 8, k % 8
            s0 = V_S + (b * 2 + qt) * 16 + 2 * kk
            t0 = V_T + (k % 4) * 2
            return qt, kk, s0, t0
        def B(k):
            qt, kk, s0, t0 = regs(k)
            return ["v_exp_f32 v%d, v%d" % (t0, s0), "v_exp_f32 v%d, v%d" % (t0 + 1, s0 + 1)]
        def C(k):
            qt, kk, s0, t0 = regs(k)
            ta, tb = V_TS + qt * 2, V_TS + qt * 2 + 1
            if kk == 0:
                o = ["v_mov_b32 v%d, v%d" % (ta, t0), "v_mov_b32 v%d, v%d" % (tb, t0 + 1)]
            else:
                o = ["v_add_f32 v%d, v%d, v%d" % (ta, ta, t0), "v_add_f32 v%d, v%d, v%d" % (tb, tb, t0 + 1)]
            o.append("v_cvt_pk_bf16_f32 v%d, v%d, v%d" % (V_P + (b * 2 + qt) * 8 + kk, t0, t0 + 1))
            return o
        st += B(0) + B(1)
        for k in range(np_):
            if k + 2 < np_:
                st += B(k + 2)
            st += C(k)
        return st

    if "att_stamp" in OPT:
        a("s_memtime s[64:65]")
        a("s_memrealtime s[66:67]")
        a("s_waitcnt lgkmcnt(0)")
    a("s_mov_b32 s35, 0")
    a("s_mov_b32 s46, 0")
    a("s_mov_b32 s47, 3")
    stamp_mark(a, 0)
    a.label("at_loop")
    for step in range(2):
        b = step
        nb = 1 - b
        khalf = 1 - step
        vhalf = 1 - step
        valu = softmax_fill(b)
        extra = {p: [] for p in range(16)}
        if step == 0:
            d = dma("K")
            extra[1] += d[0:2]
            extra[2] += d[2:3]
            extra[3] += d[3:4]
            extra[4] += d[4:]
            upd = ["s_add_u32 s46, s46, 1", "s_and_b32 s46, s46, 3", "s_cmp_eq_u32 s46, 0",
                   "s_cselect_b32 s50, s49, s48"]
            extra[8] += upd + ["v_add_u32 v%d, s50, v%d" % (V_KA + i, V_KA + i) for i in range(4)]
            extra[9] += ["v_add_u32 v%d, s50, v%d" % (V_KA + i, V_KA + i) for i in range(4, 8)]
        else:
            d = dma("V")
            extra[1] += d[0:2]
            extra[2] += d[2:3]
            extra[3] += d[3:4]
            extra[4] += d[4:]
            upd = ["s_add_u32 s47, s47, 1", "s_and_b32 s47, s47, 3", "s_cmp_eq_u32 s47, 0",
                   "s_cselect_b32 s50, s49, s48"]
            extra[0] += upd + ["v_add_u32 v%d, s50, v%d" % (V_VA + i, V_VA + i) for i in range(4)]
        if "att_nodma" in OPT:
            for p in range(16):
                extra[p] = [x for x in extra[p] if not x.startswith("buffer_load")]
        if "att_novalu" in OPT:
            valu = valu[-6:]
        nvalu = len(valu)
        vi = 0

        def cost(ins):
            if ins.startswith("v_exp"):
                return 8
            if ins.startswith("buffer_load"):
                return DMA_COST
            return 4

        def nops(pp):
            return 1 if (pp % 16) < 8 else 2

        gaps = []
        for p in range(16):
            for qt in range(2):
                fixed = []
                if qt == 0:
                    pp = p + 3
                    if pp < 8:
                        fixed.append(kread(pp % 4, pp, khalf))
                    elif pp < 16:
                        fixed += vread(pp % 4, (pp - 8) >> 1, (pp - 8) & 1, vhalf)
                    else:
                        fixed.append(kread(pp % 4, pp - 16, step))
                else:
                    fixed += extra[p]
                    if p < 15:
                        fixed.append("s_waitcnt lgkmcnt(%d)" % (nops(p + 2) + nops(p + 3)))
                gaps.append(fixed)
        total = sum(cost(x) for g in gaps for x in g) + sum(cost(x) for x in valu)
        tgt_per = total / 31.0
        cum = 0
        a("s_waitcnt lgkmcnt(%d)" % (nops(1) + nops(2)))
        for gi, fixed in enumerate(gaps):
            p, qt = gi >> 1, gi & 1
            slot = p % 4
            if p < 8:
                a(qk_mfma(slot, nb, qt, p))
            else:
                a(pv_mfma(slot, nb, qt, (p - 8) >> 1, (p - 8) & 1))
            wait = [x for x in fixed if x.startswith("s_waitcnt")]
            pre = [x for x in fixed if not x.startswith("s_waitcnt")]
            emit_list(pre)
            cum += sum(cost(x) for x in fixed)
            while vi < nvalu and cum + cost(valu[vi]) * 0.5 <= tgt_per * (gi + 1):
                a(valu[vi])
                cum += cost(valu[vi])
                vi += 1
            emit_list(wait)
        while vi < nvalu:
            a(valu[vi])
            vi += 1
        a("v_add_f32 v%d, v%d, v%d" % (V_TS, V_TS, V_TS + 1))
        a("v_add_f32 v%d, v%d, v%d" % (V_TS + 2, V_TS + 2, V_TS + 3))
        a("v_max_f32 v%d, v%d, v%d" % (V_X, V_TS, V_TS + 2))
        a("v_cmp_nge_f32 vcc, s37, v%d" % V_X)
        if "att_noslow" not in OPT:
            a("s_cbranch_vccnz at_slow%d" % b)
        a.label("at_back%d" % b)
        a("v_add_f32 v%d, v%d, v%d" % (V_L, V_L, V_TS))
        a("v_add_f32 v%d, v%d, v%d" % (V_L + 1, V_L + 1, V_TS + 2))
    a("s_waitcnt vmcnt(8)")
    if "att_nobar" not in OPT:
        a("s_barrier")
    a("s_add_u32 s35, s35, 1")
    a("s_cmp_lt_u32 s35, 32")
    a("s_cbranch_scc1 at_loop")
    stamp_mark(a, 1)
    a("s_waitcnt lgkmcnt(0)")
    if "att_stamp" in OPT:
        a("s_memtime s[68:69]")
        a("s_memrealtime s[70:71]")
        a("s_load_dwordx2 s[72:73], s[0:1], 80")
        a("s_waitcnt lgkmcnt(0)")
        a("s_sub_u32 s68, s68, s64")
        a("s_sub_u32 s70, s70, s66")
        a("s_mov_b32 s76, s72")
        a("s_and_b32 s77, s73, 0xffff")
        a("s_mov_b32 s78, 256")
        a("s_mov_b32 s79, 0x00020000")
        a("s_lshl_b32 s74, s2, 2")
        a("s_add_u32 s74, s74, s18")
        a("s_cmp_lt_u32 s74, 32")
        a("s_cbranch_scc0 at_nostamp")
        a("s_lshl_b32 s74, s74, 3")
        a("v_mov_b32 v%d, s68" % (V_X + 2))
        a("v_mov_b32 v%d, s70" % (V_X + 3))
        a("v_mov_b32 v%d, s74" % (V_X + 4))
        a("s_nop 4")
        a("buffer_store_dwordx2 v[%d:%d], v%d, s[76:79], 0 offen" % (V_X + 2, V_X + 3, V_X + 4))
        a.label("at_nostamp")
    for grp in range(2):
        for pp in range(4):
            p = grp * 4 + pp
            for ins in vread(pp, p >> 1, p & 1, 1):
                a(ins)
        a("s_waitcnt lgkmcnt(0)")
        for pp in range(4):
            p = grp * 4 + pp
            for qt in range(2):
                a(pv_mfma(pp, 1, qt, p >> 1, p & 1))
        a("s_nop 7")
    a("s_nop 15")
    add64(a, 40, 8, 9, WS_O)
    srd(a, 44, 40, 41, 2048 * 4096 * 2)
    for qt in range(2):
        a("v_mov_b32 v%d, v%d" % (V_X, V_L + qt))
        a("s_nop 1")
        a("v_permlane32_swap_b32 v%d, v%d" % (V_L + qt, V_X))
        a("s_nop 1")
        a("v_add_f32 v%d, v%d, v%d" % (V_X, V_X, V_L + qt))
        a("v_rcp_f32 v%d, v%d" % (V_X + 1, V_X))
        a("s_nop 0")
        for dt in range(4):
            o = A_O + (qt * 4 + dt) * 16
            for pr in range(2):
                for i in range(8):
                    a("v_accvgpr_read_b32 v%d, a%d" % (8 + i, o + pr * 8 + i))
                for i in range(8):
                    a("v_mul_f32 v%d, v%d, v%d" % (8 + i, 8 + i, V_X + 1))
                for i in range(4):
                    a("v_cvt_pk_bf16_f32 v%d, v%d, v%d" % (16 + i, 8 + 2 * i, 9 + 2 * i))
                a("s_nop 1")
                a("v_permlane32_swap_b32 v16, v18")
                a("v_permlane32_swap_b32 v17, v19")
                a("buffer_store_dwordx4 v[16:19], v%d, s[44:47], 0 offen offset:%d%s" % (V_X + 8 + qt, dt * 64 + pr * 32, STF))
                a("s_nop 1")
    a("s_branch at_fin")
    for b in range(2):
        a.label("at_slow%d" % b)
        a("s_nop 15")
        for qt in range(2):
            s0 = V_S + (b * 2 + qt) * 16
            x = V_X
            a("v_max3_f32 v%d, v%d, v%d, v%d" % (x, s0, s0 + 1, s0 + 2))
            for i in range(3, 15, 2):
                a("v_max3_f32 v%d, v%d, v%d, v%d" % (x, x, s0 + i, s0 + i + 1))
            a("v_max_f32 v%d, v%d, v%d" % (x, x, s0 + 15))
            a("v_mov_b32 v%d, v%d" % (x + 1, x))
            a("s_nop 1")
            a("v_permlane32_swap_b32 v%d, v%d" % (x, x + 1))
            a("s_nop 1")
            a("v_max_f32 v%d, v%d, v%d" % (x, x, x + 1))
            a("v_max_f32 v%d, 0, v%d" % (x, x))
            a("v_sub_f32 v%d, 0, v%d" % (x + 1, x))
            a("v_exp_f32 v%d, v%d" % (x + 1, x + 1))
            s1 = V_S + ((1 - b) * 2 + qt) * 16
            for i in range(16):
                a("v_sub_f32 v%d, v%d, v%d" % (s0 + i, s0 + i, x))
                a("v_sub_f32 v%d, v%d, v%d" % (s1 + i, s1 + i, x))
                a("v_sub_f32 v%d, v%d, v%d" % (V_NM + qt * 16 + i, V_NM + qt * 16 + i, x))
            a("v_mul_f32 v%d, v%d, v%d" % (V_L + qt, V_L + qt, x + 1))
            for blk in range(16):
                o = A_O + qt * 64 + blk * 4
                for i in range(4):
                    a("v_accvgpr_read_b32 v%d, a%d" % (x + 2 + i, o + i))
                for i in range(4):
                    a("v_mul_f32 v%d, v%d, v%d" % (x + 2 + i, x + 2 + i, x + 1))
                for i in range(4):
                    a("v_accvgpr_write_b32 a%d, v%d" % (o + i, x + 2 + i))
        for ins in softmax_fill(b):
            a(ins)
        a("v_add_f32 v%d, v%d, v%d" % (V_TS, V_TS, V_TS + 1))
        a("v_add_f32 v%d, v%d, v%d" % (V_TS + 2, V_TS + 2, V_TS + 3))
        a("s_nop 1")
        a("s_branch at_back%d" % b)
    a.label("at_fin")
    stamp_exit(a, "at")
    a.label("at_done")
    a("s_endpgm")
    return kernel_desc(name, 256, 256)


def gen_k3(a):
    name = "out_kernel"
    kernel_begin(a, name)
    stamp_entry(a)
    STAGE = 32768
    R = K3_R
    V_AD, V_BD = 200, 204
    V_XA, V_WA = 212, 214
    V_LANE = 216
    a("s_cmp_ge_u32 s2, 256")
    a("s_cbranch_scc1 k3_done")
    a("s_load_dwordx2 s[4:5], s[0:1], 0")
    a("s_load_dwordx2 s[10:11], s[0:1], 72")
    a("s_load_dwordx2 s[12:13], s[0:1], 88")
    a("s_and_b32 s38, s2, 7")
    a("s_lshr_b32 s39, s2, 3")
    a("s_and_b32 s40, s39, 3")
    a("s_lshl_b32 s16, s38, 2")
    a("s_add_u32 s16, s16, s40")
    a("s_lshr_b32 s17, s2, 5")
    a("v_lshrrev_b32 v1, 6, v0")
    a("v_and_b32 v0, 63, v0")
    a("v_mov_b32 v%d, v0" % V_LANE)
    a("s_nop 0")
    a("v_readfirstlane_b32 s18, v1")
    a("s_waitcnt lgkmcnt(0)")
    add64(a, 40, 12, 13, WS_O)
    srd(a, 20, 40, 41, 46 * 524288)
    add64(a, 40, 12, 13, WS_W)
    srd(a, 24, 40, 41, 4 * 5888 * 256)
    a("s_lshl_b32 s38, s16, 6")
    a("s_lshl_b32 s39, s18, 4")
    a("s_add_u32 s38, s38, s39")
    a("s_lshl_b32 s28, s38, 8")
    a("s_lshr_b32 s38, s17, 1")
    a("s_mul_i32 s29, s38, 0x%x" % (5888 * 256))
    a("s_and_b32 s38, s17, 1")
    a("s_lshl_b32 s38, s38, 7")
    a("s_add_u32 s29, s29, s38")
    a("s_lshl_b32 s38, s18, 13")
    a("s_add_u32 s29, s29, s38")
    a("s_lshl_b32 s31, s18, 12")
    a("s_add_u32 s32, s31, 0x4000")
    a("s_mov_b32 s48, 0x%x" % STAGE)
    a("s_mov_b32 s49, 0x%x" % ((-(R - 1) * STAGE) & 0xffffffff))
    a("v_lshrrev_b32 v1, 4, v0")
    a("v_and_b32 v2, 15, v0")
    for j in range(4):
        a("v_add_u32 v3, %d, v1" % (4 * j))
        a("v_xor_b32 v4, v2, v3")
        a("v_lshlrev_b32 v4, 4, v4")
        a("v_lshl_add_u32 v%d, v1, 8, v4" % (V_AD + j))
    a("v_lshrrev_b32 v1, 3, v0")
    a("v_and_b32 v2, 7, v0")
    a("v_lshrrev_b32 v3, 4, v0")
    a("v_and_b32 v3, 1, v3")
    a("v_lshlrev_b32 v3, 2, v3")
    a("v_xor_b32 v2, v2, v3")
    a("v_lshlrev_b32 v2, 4, v2")
    a("v_lshl_add_u32 v2, v1, 8, v2")
    for j in range(4):
        a("v_add_u32 v%d, %d, v2" % (V_BD + j, 8 * j * 256 - 1024 * j))

    def dma_tile():
        ins = []
        ins.append("s_add_u32 m0, s31, s33")
        for j in range(4):
            ins.append("buffer_load_dwordx4 v%d, s[20:23], s28 offen offset:%d lds" % (V_AD + j, j * 1024))
        ins.append("s_add_u32 m0, s32, s33")
        for j in range(4):
            ins.append("buffer_load_dwordx4 v%d, s[24:27], s29 offen offset:%d lds" % (V_BD + j, j * 1024))
        ins.append("s_add_u32 s28, s28, 0x80000")
        ins.append("s_add_u32 s29, s29, 0x8000")
        ins.append("s_add_u32 s33, s33, 0x%x" % STAGE)
        ins.append("s_cmp_eq_u32 s33, 0x%x" % (STAGE * R))
        ins.append("s_cselect_b32 s33, 0, s33")
        return ins

    def emit1(ins):
        a(ins)
        if ins.startswith("s_add_u32 m0"):
            a("s_nop 0")

    a("s_mov_b32 s33, 0")
    for _ in range(R - 1):
        for ins in dma_tile():
            emit1(ins)
    a("v_and_b32 v1, 31, v0")
    a("v_lshrrev_b32 v2, 5, v0")
    a("v_and_b32 v3, 15, v0")
    a("v_lshlrev_b32 v4, 8, v1")
    a("s_lshl_b32 s38, s18, 1")
    a("v_add_u32 v5, s38, v2")
    a("v_xor_b32 v6, v5, v3")
    a("v_lshl_add_u32 v%d, v6, 4, v4" % V_XA)
    a("v_xor_b32 v6, 8, v6")
    a("v_lshl_add_u32 v%d, v6, 4, v4" % (V_XA + 1))
    a("v_lshrrev_b32 v1, 4, v0")
    a("v_and_b32 v1, 1, v1")
    a("v_lshrrev_b32 v3, 2, v3")
    a("v_and_b32 v4, 3, v0")
    a("v_lshrrev_b32 v5, 1, v4")
    a("v_lshl_add_u32 v5, v1, 1, v5")
    a("v_lshrrev_b32 v6, 1, v3")
    a("v_lshlrev_b32 v6, 2, v6")
    a("v_xor_b32 v5, v5, v6")
    a("v_xor_b32 v6, 4, v5")
    a("v_lshl_add_u32 v7, v2, 3, v3")
    a("s_lshl_b32 s38, s18, 4")
    a("v_add_u32 v7, s38, v7")
    a("v_lshlrev_b32 v7, 7, v7")
    a("v_and_b32 v4, 1, v4")
    a("v_lshl_add_u32 v7, v4, 3, v7")
    a("v_add_u32 v7, 0x4000, v7")
    a("v_lshl_add_u32 v%d, v5, 4, v7" % V_WA)
    a("v_lshl_add_u32 v%d, v6, 4, v7" % (V_WA + 1))
    for i in range(128):
        a("v_accvgpr_write_b32 a%d, 0" % i)
    a("s_mov_b32 s46, 0")

    def frag_reads2(par):
        base = par * 32
        out = []
        for kk in range(2):
            b = base + kk * 16
            ins = []
            for rt in range(2):
                ins.append("ds_read_b128 v[%d:%d], v%d offset:%d" % (b + 8 + rt * 4, b + 11 + rt * 4, V_XA + kk, rt * 8192))
            for nt in range(2):
                for p in range(2):
                    r0 = b + nt * 4 + p * 2
                    ins.append("ds_read_b64_tr_b16 v[%d:%d], v%d offset:%d" % (r0, r0 + 1, V_WA + nt, kk * 8192 + p * 512))
            out += [ins[0], ins[2], ins[3], ins[1], ins[4], ins[5]]
        return out

    def mfmas(par, phase):
        out = []
        for kk in range(2):
            for nt in range(2):
                for rt in range(2):
                    acc = phase * 64 + (nt * 2 + rt) * 16
                    b = par * 32 + kk * 16
                    out.append("v_mfma_f32_32x32x16_bf16 a[%d:%d], v[%d:%d], v[%d:%d], a[%d:%d]" % (
                        acc, acc + 15, b + nt * 4, b + nt * 4 + 3, b + 8 + rt * 4, b + 11 + rt * 4, acc, acc + 15))
        return out

    adv = ["s_add_u32 s46, s46, 1", "s_cmp_eq_u32 s46, %d" % R, "s_cselect_b32 s50, s49, s48",
           "s_cselect_b32 s46, 0, s46"] + ["v_add_u32 v%d, s50, v%d" % (r, r) for r in (V_XA, V_XA + 1, V_WA, V_WA + 1)]

    def body(par, mphase):
        a("s_waitcnt vmcnt(%d) lgkmcnt(0)" % (8 * (R - 2)))
        a("s_barrier")
        rd = frag_reads2(par)
        mf = mfmas(1 - par, mphase) if mphase is not None else []
        dm = dma_tile()
        for ins in rd[:6]:
            a(ins)
        mi, ri = 0, 6
        for ins in dm:
            emit1(ins)
            if ins.startswith("buffer_load"):
                if mi < len(mf):
                    a(mf[mi])
                    mi += 1
                if ri < len(rd):
                    a(rd[ri])
                    ri += 1
        for ins in adv:
            a(ins)

    stamp_mark(a, 0)
    body(0, None)
    a("s_mov_b32 s35, 0")
    a.label("k3_loop0")
    body(1, 0)
    body(0, 0)
    a("s_add_u32 s35, s35, 1")
    a("s_cmp_lt_u32 s35, 16")
    a("s_cbranch_scc1 k3_loop0")
    a("s_mov_b32 s35, 0")
    a.label("k3_loop1")
    body(1, 1)
    body(0, 1)
    a("s_add_u32 s35, s35, 1")
    a("s_cmp_lt_u32 s35, 7")
    a("s_cbranch_scc1 k3_loop1")
    stamp_mark(a, 1)
    a("s_waitcnt vmcnt(0) lgkmcnt(0)")
    a("s_barrier")
    a("s_nop 15")
    a("v_mov_b32 v0, v%d" % V_LANE)
    a("v_lshlrev_b32 v1, 4, v0")
    a("s_lshl_b32 s38, s18, 15")
    a("v_add_u32 v1, s38, v1")
    for ph in range(2):
        for tile in range(4):
            for g in range(4):
                r = ph * 64 + tile * 16 + g * 4
                a("ds_write_b128 v1, a[%d:%d] offset:%d" % (r, r + 3, (ph * 4 + tile) * 4096 + g * 1024))
    a("s_waitcnt lgkmcnt(0)")
    a("s_barrier")
    a("v_lshlrev_b32 v1, 4, v0")
    a("s_lshl_b32 s38, s18, 12")
    a("v_add_u32 v1, s38, v1")
    a("v_add_u32 v2, 0x10000, v1")
    for ph in range(2):
        for src in range(4):
            for g in range(4):
                d = 64 + ph * 64 + src * 16 + g * 4
                a("ds_read_b128 v[%d:%d], v%d offset:%d" % (d, d + 3, 1 + (src >> 1), (src & 1) * 32768 + ph * 16384 + g * 1024))
    srd(a, 20, 4, 5, 2048 * 512 * 2)
    srd(a, 24, 10, 11, 2048 * 512 * 2)
    a("v_and_b32 v1, 31, v0")
    a("v_lshrrev_b32 v2, 5, v0")
    a("s_and_b32 s38, s18, 1")
    a("s_lshl_b32 s38, s38, 5")
    a("s_lshl_b32 s39, s16, 6")
    a("s_add_u32 s38, s38, s39")
    a("v_add_u32 v1, s38, v1")
    a("v_lshlrev_b32 v1, 10, v1")
    a("s_lshr_b32 s38, s18, 1")
    a("s_lshl_b32 s38, s38, 6")
    a("s_lshl_b32 s39, s17, 7")
    a("s_add_u32 s38, s38, s39")
    a("v_add_u32 v1, s38, v1")
    a("v_lshl_add_u32 v3, v2, 3, v1")
    a("v_lshl_add_u32 v4, v2, 4, v1")
    for q in range(4):
        a("buffer_load_dwordx2 v[%d:%d], v3, s[20:23], 0 offen offset:%d" % (192 + 2 * q, 193 + 2 * q, q * 16))
    a("s_waitcnt lgkmcnt(0)")
    for ph in range(2):
        b = 64 + ph * 64
        for i in range(16):
            d = 32 + ph * 16 + i
            a("v_add_f32 v%d, v%d, v%d" % (d, b + i, b + 16 + i))
            a("v_add_f32 v%d, v%d, v%d" % (b + 32 + i, b + 32 + i, b + 48 + i))
            a("v_add_f32 v%d, v%d, v%d" % (d, d, b + 32 + i))
    a("s_mov_b32 s38, 0xbfb8aa3b")
    for i in range(16):
        sv, fv, z = 32 + i, 48 + i, 80 + i
        bf16r(a, sv, sv)
        bf16r(a, fv, fv)
        a("v_mul_f32 v%d, s38, v%d" % (z, fv))
        a("v_exp_f32 v%d, v%d" % (z, z))
    for i in range(16):
        z = 80 + i
        a("v_add_f32 v%d, 1.0, v%d" % (z, z))
        a("v_rcp_f32 v%d, v%d" % (z, z))
    for i in range(16):
        sv, fv, z = 32 + i, 48 + i, 80 + i
        a("v_mul_f32 v%d, v%d, v%d" % (fv, fv, z))
        bf16r(a, fv, fv)
        a("v_mul_f32 v%d, v%d, v%d" % (sv, sv, fv))
        bf16r(a, sv, sv)
    a("s_waitcnt vmcnt(0)")
    for q in range(4):
        for hh in range(2):
            xr = 192 + 2 * q + hh
            a("v_lshlrev_b32 v96, 16, v%d" % xr)
            a("v_and_b32 v97, 0xffff0000, v%d" % xr)
            a("v_add_f32 v96, v96, v%d" % (32 + 4 * q + 2 * hh))
            a("v_add_f32 v97, v97, v%d" % (33 + 4 * q + 2 * hh))
            a("v_cvt_pk_bf16_f32 v%d, v96, v97" % (100 + 2 * q + hh))
    a("s_nop 1")
    for pr in range(2):
        b = 100 + 4 * pr
        a("v_permlane32_swap_b32 v%d, v%d" % (b, b + 2))
        a("v_permlane32_swap_b32 v%d, v%d" % (b + 1, b + 3))
        a("buffer_store_dwordx4 v[%d:%d], v4, s[24:27], 0 offen offset:%d" % (b, b + 3, pr * 32))
    a.label("k3_fin")
    stamp_exit(a, "k3")
    a.label("k3_done")
    a("s_endpgm")
    return kernel_desc(name, 220, 128)


def main():
    a = Asm()
    descs = []
    launches = []
    descs.append(gen_ln(a))
    launches.append("; @launch kernel=ln_kernel grid=(512,1,1) block=(256,1,1) lds=0")
    descs.append(gen_k1(a))
    launches.append("; @launch kernel=proj_kernel grid=(256,1,1) block=(256,1,1) lds=131072")
    descs.append(gen_attn(a))
    launches.append("; @launch kernel=attn_kernel grid=(256,1,1) block=(256,1,1) lds=131072")
    descs.append(gen_k3(a))
    launches.append("; @launch kernel=out_kernel grid=(256,1,1) block=(256,1,1) lds=%d" % max(131072, 32768 * K3_R))
    out = HEADER + "\n".join(launches) + "\n"
    out += '.amdgcn_target "amdgcn-amd-amdhsa--gfx950"\n.text\n'
    out += a.text()
    out += '.section .rodata,"a"\n'
    for d in descs:
        out += ".p2align 6\n" + d
    path = sys.argv[1] if len(sys.argv) > 1 else "cdna_kernels/%s.s" % NAME
    open(path, "w").write(out)


if __name__ == "__main__":
    main()
```

```python
import os
import sys

OPT = set(os.environ.get("GENOPT", "").split(","))

NAME = "recurrent_scan__mha_block_cached__glu_gated_geglu__prompt"

WS_XN = 0
WS_Q = 4 << 20
WS_H = 48 << 20
WS_W = 56 << 20
WS_P = 64 << 20
WS_O = 32 << 20
DMA_COST = 12
STF = os.environ.get("STF", "")
K3_R = int(os.environ.get("K3_R", "5"))
DEBUG_K3 = False

HEADER = """; Kernarg layout for this problem (96 bytes, ptrs only, base s[0:1]):
"""


class Asm:
    def __init__(self):
        self.lines = []

    def __call__(self, s):
        self.lines.append("    " + s)

    def label(self, l):
        self.lines.append(l + ":")

    def raw(self, s):
        self.lines.append(s)

    def text(self):
        return "\n".join(self.lines) + "\n"


def kernel_begin(a, name):
    a.raw(".globl %s" % name)
    a.raw(".p2align 8")
    a.raw(".type %s,@function" % name)
    a.label(name)


def kernel_desc(name, nvgpr, nagpr, nsgpr=102):
    acc_off = (nvgpr + 3) // 4 * 4
    total = acc_off + nagpr if nagpr else nvgpr
    return """.amdhsa_kernel %s
  .amdhsa_next_free_vgpr %d
  .amdhsa_next_free_sgpr %d
  .amdhsa_accum_offset %d
  .amdhsa_group_segment_fixed_size 0
  .amdhsa_kernarg_size 96
  .amdhsa_user_sgpr_count 2
  .amdhsa_user_sgpr_kernarg_segment_ptr 1
  .amdhsa_system_sgpr_workgroup_id_x 1
.end_amdhsa_kernel
""" % (name, total, nsgpr, acc_off)


def srd(a, d, lo, hi, nbytes):
    a("s_mov_b32 s%d, s%d" % (d, lo))
    a("s_and_b32 s%d, s%d, 0xffff" % (d + 1, hi))
    a("s_mov_b32 s%d, 0x%x" % (d + 2, nbytes))
    a("s_mov_b32 s%d, 0x00020000" % (d + 3))


def add64(a, dlo, lo, hi, imm):
    a("s_add_u32 s%d, s%d, 0x%x" % (dlo, lo, imm))
    a("s_addc_u32 s%d, s%d, 0" % (dlo + 1, hi))


def bf16r(a, dst, src, tmp=None):
    a("v_cvt_pk_bf16_f32 v%d, v%d, v%d" % (dst, src, src))
    a("v_lshlrev_b32 v%d, 16, v%d" % (dst, dst))


def stamp_entry(a):
    if "stamp" not in OPT:
        return
    a("s_memrealtime s[90:91]")
    a("s_mov_b32 s80, 0")
    a("s_mov_b32 s82, 0")


def stamp_mark(a, n):
    if "stamp" not in OPT:
        return
    a("s_memrealtime s[%d:%d]" % (80 + 2 * n, 81 + 2 * n))
    a("s_waitcnt lgkmcnt(0)")


def stamp_exit(a, tag):
    if "stamp" not in OPT:
        return
    a("s_waitcnt vmcnt(0) lgkmcnt(0)")
    a("s_memrealtime s[92:93]")
    a("s_load_dwordx2 s[94:95], s[0:1], 88")
    a("s_waitcnt lgkmcnt(0)")
    a("s_add_u32 s94, s94, 0x%x" % ((200 << 20) + 256 * ["ln", "k1", "at", "k3", "k4"].index(tag)))
    a("s_addc_u32 s95, s95, 0")
    a("s_and_b32 s88, s2, 63")
    a("s_cmp_eq_u32 s88, 0")
    a("s_cbranch_scc0 %s_nost" % tag)
    a("s_lshr_b32 s88, s2, 6")
    a("s_lshl_b32 s88, s88, 4")
    a("s_add_u32 s88, s88, 128")
    a("s_mov_b32 s96, s94")
    a("s_and_b32 s97, s95, 0xffff")
    a("s_mov_b32 s98, 256")
    a("s_mov_b32 s99, 0x00020000")
    a("v_mov_b32 v4, s90")
    a("v_mov_b32 v5, s80")
    a("v_mov_b32 v6, s82")
    a("v_mov_b32 v7, s92")
    a("v_mov_b32 v2, s88")
    a("s_mov_b64 exec, 1")
    a("s_nop 4")
    a("buffer_store_dwordx4 v[4:7], v2, s[96:99], 0 offen")
    a("s_waitcnt vmcnt(0)")
    a.label("%s_nost" % tag)

LANE_REG = {}

def wave_allreduce_add(a, v, t):
    for off in (0x041F, 0x081F, 0x101F, 0x201F, 0x401F):
        a("ds_swizzle_b32 v%d, v%d offset:0x%04X" % (t, v, off))
        a("s_waitcnt lgkmcnt(0)")
        a("v_add_f32 v%d, v%d, v%d" % (v, v, t))
    a("v_mov_b32 v%d, v%d" % (t, v))
    a("s_nop 1")
    a("v_permlane32_swap_b32 v%d, v%d" % (v, t))
    a("s_nop 1")
    a("v_add_f32 v%d, v%d, v%d" % (v, v, t))


def gen_ln(a):
    name = "ln_kernel"
    kernel_begin(a, name)
    stamp_entry(a)
    a("s_cmp_ge_u32 s2, 512")
    a("s_cbranch_scc1 ln_done")
    a("s_load_dwordx2 s[4:5], s[0:1], 0")
    a("s_load_dwordx2 s[6:7], s[0:1], 88")
    a("v_lshrrev_b32 v1, 6, v0")
    a("v_and_b32 v2, 63, v0")
    a("s_lshl_b32 s3, s2, 2")
    a("v_add_u32 v1, s3, v1")
    a("v_lshlrev_b32 v3, 10, v1")
    a("v_lshl_add_u32 v3, v2, 4, v3")
    a("s_waitcnt lgkmcnt(0)")
    srd(a, 8, 4, 5, 2048 * 512 * 2)
    srd(a, 12, 6, 7, 2048 * 512 * 2)
    a("buffer_load_dwordx4 v[4:7], v3, s[8:11], 0 offen")
    a("s_waitcnt vmcnt(0)")
    for i in range(4):
        a("v_lshlrev_b32 v%d, 16, v%d" % (8 + 2 * i, 4 + i))
        a("v_and_b32 v%d, 0xffff0000, v%d" % (9 + 2 * i, 4 + i))
    a("v_add_f32 v16, v8, v9")
    for i in range(10, 16):
        a("v_add_f32 v16, v16, v%d" % i)
    wave_allreduce_add(a, 16, 17)
    a("v_mul_f32 v16, 0x3b000000, v16")
    a("v_sub_f32 v18, v8, v16")
    a("v_mul_f32 v19, v18, v18")
    for i in range(9, 16):
        a("v_sub_f32 v18, v%d, v16" % i)
        a("v_fmac_f32 v19, v18, v18")
    wave_allreduce_add(a, 19, 17)
    a("v_mul_f32 v19, 0x3b000000, v19")
    bf16r(a, 16, 16)
    bf16r(a, 19, 19)
    a("v_add_f32 v19, 0x3727c5ac, v19")
    bf16r(a, 19, 19)
    a("v_sqrt_f32 v19, v19")
    a("s_nop 0")
    bf16r(a, 19, 19)
    a("v_rcp_f32 v20, v19")
    a("s_nop 0")
    for i in range(8):
        r = 8 + i
        a("v_sub_f32 v%d, v%d, v16" % (r, r))
        bf16r(a, r, r)
        a("v_mul_f32 v21, v%d, v20" % r)
        a("v_fma_f32 v22, -v21, v19, v%d" % r)
        a("v_fma_f32 v%d, v22, v20, v21" % r)
    for i in range(4):
        a("v_cvt_pk_bf16_f32 v%d, v%d, v%d" % (4 + i, 8 + 2 * i, 9 + 2 * i))
    a("v_lshrrev_b32 v20, 2, v2")
    a("v_lshlrev_b32 v20, 17, v20")
    a("v_lshl_add_u32 v20, v1, 6, v20")
    a("v_and_b32 v21, 3, v2")
    a("v_lshl_add_u32 v20, v21, 4, v20")
    a("buffer_store_dwordx4 v[4:7], v20, s[12:15], 0 offen")
    a.label("ln_fin")
    stamp_exit(a, "ln")
    a.label("ln_done")
    a("s_endpgm")
    return kernel_desc(name, 24, 0, 102)


def gen_k1(a):
    name = "proj_kernel"
    kernel_begin(a, name)
    stamp_entry(a)
    NKT = 16
    STAGE = 32768
    V_AD, V_BD, V_XA, V_WA, V_LANE = 100, 102, 104, 106, 108
    a("s_and_b32 s16, s2, 31")
    a("s_lshr_b32 s17, s2, 5")
    a("s_cmp_ge_u32 s17, 8")
    a("s_cbranch_scc1 k1_done")
    a("s_cmp_ge_u32 s16, 30")
    a("s_cbranch_scc1 k1_relayout")
    a("s_load_dwordx2 s[4:5], s[0:1], 24")
    a("s_load_dwordx4 s[8:11], s[0:1], 48")
    a("s_load_dwordx2 s[6:7], s[0:1], 88")
    a("v_lshrrev_b32 v1, 6, v0")
    a("v_and_b32 v0, 63, v0")
    a("v_mov_b32 v%d, v0" % V_LANE)
    a("s_nop 0")
    a("v_readfirstlane_b32 s18, v1")
    a("s_waitcnt lgkmcnt(0)")
    srd(a, 20, 6, 7, 2048 * 512 * 2)
    a("s_lshr_b32 s37, s18, 2")
    a("s_cmp_lt_u32 s16, 16")
    a("s_cselect_b32 s35, 1, 0")
    a("s_cbranch_scc0 k1_selgu")
    a("s_lshl_b32 s38, s16, 9")
    a("s_lshl_b32 s39, s37, 8")
    a("s_add_u32 s38, s38, s39")
    a("s_add_u32 s40, s4, s38")
    a("s_addc_u32 s41, s5, 0")
    a("s_mov_b32 s42, 8192")
    a("s_mov_b32 s43, 0x%x" % (512 * 8192))
    a("s_sub_u32 s43, s43, s38")
    a("s_branch k1_seldone")
    a.label("k1_selgu")
    a("s_sub_u32 s38, s16, 16")
    a("s_lshl_b32 s38, s38, 8")
    a("s_cmp_eq_u32 s37, 0")
    a("s_cselect_b32 s40, s8, s10")
    a("s_cselect_b32 s41, s9, s11")
    a("s_add_u32 s40, s40, s38")
    a("s_addc_u32 s41, s41, 0")
    a("s_mov_b32 s42, 3584")
    a("s_mov_b32 s43, 0x%x" % (512 * 3584))
    a("s_sub_u32 s43, s43, s38")
    a.label("k1_seldone")
    a("s_mov_b32 s24, s40")
    a("s_and_b32 s25, s41, 0xffff")
    a("s_mov_b32 s26, s43")
    a("s_mov_b32 s27, 0x00020000")
    a("s_lshl_b32 s30, s42, 5")
    a("s_and_b32 s38, s18, 3")
    a("s_lshl_b32 s39, s38, 3")
    a("s_mul_i32 s29, s39, s42")
    a("s_lshl_b32 s28, s17, 14")
    a("s_lshl_b32 s39, s18, 11")
    a("s_add_u32 s28, s28, s39")
    a("s_lshl_b32 s31, s18, 11")
    a("s_lshl_b32 s32, s37, 13")
    a("s_lshl_b32 s39, s38, 11")
    a("s_add_u32 s32, s32, s39")
    a("s_add_u32 s32, s32, 16384")
    a("v_lshrrev_b32 v1, 2, v0")
    a("v_and_b32 v2, 3, v0")
    a("v_lshrrev_b32 v3, 4, v0")
    a("v_and_b32 v4, 3, v3")
    a("v_xor_b32 v2, v2, v4")
    a("v_lshlrev_b32 v2, 4, v2")
    a("v_lshl_add_u32 v%d, v1, 6, v2" % V_AD)
    a("v_and_b32 v1, 15, v0")
    a("v_lshlrev_b32 v4, 2, v3")
    a("v_xor_b32 v1, v1, v4")
    a("v_lshlrev_b32 v1, 4, v1")
    a("v_mul_lo_u32 v4, v3, s42")
    a("v_add_u32 v%d, v1, v4" % V_BD)
    a("s_lshl_b32 s39, s42, 2")
    a("s_sub_u32 s39, s39, 1024")
    a("v_add_u32 v%d, s39, v%d" % (V_BD + 1, V_BD))

    def dma_tile():
        ins = []
        ins.append("s_add_u32 m0, s31, s33")
        for j in range(2):
            ins.append("buffer_load_dwordx4 v%d, s[20:23], s28 offen offset:%d lds" % (V_AD, j * 1024))
        ins.append("s_add_u32 m0, s32, s33")
        for j in range(2):
            ins.append("buffer_load_dwordx4 v%d, s[24:27], s29 offen offset:%d lds" % (V_BD + j, j * 1024))
        ins.append("s_add_u32 s28, s28, 0x20000")
        ins.append("s_add_u32 s29, s29, s30")
        ins.append("s_add_u32 s33, s33, 0x%x" % STAGE)
        ins.append("s_and_b32 s33, s33, 0x1ffff")
        return ins

    def emit1(ins):
        a(ins)
        if ins.startswith("s_add_u32 m0"):
            a("s_nop 0")

    a("s_mov_b32 s33, 0")
    for _ in range(3):
        for ins in dma_tile():
            emit1(ins)
    a("s_lshr_b32 s44, s18, 2")
    a("s_and_b32 s45, s18, 3")
    a("v_and_b32 v1, 31, v0")
    a("v_lshrrev_b32 v2, 5, v0")
    a("v_lshrrev_b32 v3, 2, v0")
    a("v_and_b32 v3, 3, v3")
    a("v_xor_b32 v4, v2, v3")
    a("v_xor_b32 v5, 2, v4")
    a("s_lshl_b32 s39, s44, 13")
    a("v_lshlrev_b32 v1, 6, v1")
    a("v_add_u32 v1, s39, v1")
    a("v_lshl_add_u32 v%d, v4, 4, v1" % V_XA)
    a("v_lshl_add_u32 v%d, v5, 4, v1" % (V_XA + 1))
    a("v_lshrrev_b32 v1, 4, v0")
    a("v_and_b32 v1, 1, v1")
    a("v_and_b32 v3, 15, v0")
    a("v_lshrrev_b32 v3, 2, v3")
    a("v_and_b32 v4, 3, v0")
    a("v_lshrrev_b32 v5, 1, v4")
    a("v_lshl_add_u32 v5, v1, 1, v5")
    a("s_lshl_b32 s39, s45, 2")
    a("v_add_u32 v5, s39, v5")
    a("v_lshlrev_b32 v6, 2, v3")
    a("v_xor_b32 v7, v5, v6")
    a("v_lshl_add_u32 v9, v2, 3, v3")
    a("v_lshlrev_b32 v9, 8, v9")
    a("v_and_b32 v4, 1, v4")
    a("v_lshl_add_u32 v9, v4, 3, v9")
    a("v_add_u32 v9, 0x4000, v9")
    a("v_lshl_add_u32 v%d, v7, 4, v9" % V_WA)
    for i in range(128):
        a("v_accvgpr_write_b32 a%d, 0" % i)
    a("s_waitcnt vmcnt(4)")
    a("s_barrier")

    def frag_reads(setn, ks):
        base = setn * 24
        xs = ["ds_read_b128 v[%d:%d], v%d offset:%d" % (base + 8 + rt * 4, base + 11 + rt * 4, V_XA + ks, rt * 2048)
              for rt in range(4)]
        ws_ = []
        for sub in range(2):
            for p in range(2):
                r0 = base + sub * 4 + p * 2
                ws_.append("ds_read_b64_tr_b16 v[%d:%d], v%d offset:%d" % (r0, r0 + 1, V_WA, sub * 8192 + ks * 4096 + p * 1024))
        return [xs[0], ws_[0], ws_[1], xs[1], ws_[2], ws_[3], xs[2], xs[3]]

    for ins in frag_reads(0, 0):
        a(ins)
    a("s_mov_b32 s34, 0")
    a("s_mov_b32 s48, 0x%x" % STAGE)
    a("s_mov_b32 s49, 0x%x" % ((-3 * STAGE) & 0xffffffff))
    a("s_mov_b32 s46, 0")
    stamp_mark(a, 0)
    a.label("k1_loop")
    for ks in range(2):
        setn = ks
        fill = []
        if ks == 0:
            fill += frag_reads(1, 1) + dma_tile()
        else:
            fill += ["s_add_u32 s46, s46, 1", "s_and_b32 s46, s46, 3", "s_cmp_eq_u32 s46, 0",
                     "s_cselect_b32 s36, s49, s48"]
            fill += ["v_add_u32 v%d, s36, v%d" % (r, r) for r in (V_XA, V_XA + 1, V_WA)]
            fill += frag_reads(0, 0)
        a("s_waitcnt lgkmcnt(0)")
        mf = []
        for rt in range(4):
            for sub in range(2):
                acc = (sub * 4 + rt) * 16
                b = setn * 24
                mf.append("v_mfma_f32_32x32x16_bf16 a[%d:%d], v[%d:%d], v[%d:%d], a[%d:%d]" % (
                    acc, acc + 15, b + sub * 4, b + sub * 4 + 3, b + 8 + rt * 4, b + 11 + rt * 4, acc, acc + 15))
        fi = 0
        per = -(-len(fill) // 6)
        for m in mf:
            a(m)
            for _ in range(per):
                if fi < len(fill):
                    emit1(fill[fi])
                    fi += 1
    a("s_waitcnt vmcnt(4)")
    a("s_barrier")
    a("s_add_u32 s34, s34, 1")
    a("s_cmp_lt_u32 s34, %d" % NKT)
    a("s_cbranch_scc1 k1_loop")
    stamp_mark(a, 1)
    a("s_waitcnt vmcnt(0) lgkmcnt(0)")
    a("s_nop 15")
    a("s_nop 7")
    a("v_mov_b32 v0, v%d" % V_LANE)
    a("v_and_b32 v1, 31, v0")
    a("v_lshrrev_b32 v2, 5, v0")
    a("s_lshl_b32 s38, s17, 8")
    a("s_lshl_b32 s39, s44, 7")
    a("s_add_u32 s38, s38, s39")
    a("v_add_u32 v1, s38, v1")
    a("v_lshlrev_b32 v3, 8, v1")
    a("v_lshl_add_u32 v3, v2, 4, v3")
    a("s_lshl_b32 s39, s45, 6")
    a("v_add_u32 v3, s39, v3")
    a("s_cmp_eq_u32 s35, 0")
    a("s_cbranch_scc1 k1_epi_gu")
    add64(a, 40, 6, 7, WS_Q)
    srd(a, 24, 40, 41, 2048 * 4096 * 2)
    a("s_lshl_b32 s38, s16, 20")
    a("v_add_u32 v3, s38, v3")
    a("v_add_u32 v4, 0x80000, v3")
    for rt in range(4):
        for sub in range(2):
            acc = (sub * 4 + rt) * 16
            for i in range(16):
                a("v_accvgpr_read_b32 v%d, a%d" % (8 + i, acc + i))
            for i in range(16):
                a("v_mul_f32 v%d, 0x3e0293ee, v%d" % (8 + i, 8 + i))
            for i in range(8):
                a("v_cvt_pk_bf16_f32 v%d, v%d, v%d" % (24 + i, 8 + 2 * i, 9 + 2 * i))
            a("s_nop 1")
            for pr in range(2):
                b = 24 + 4 * pr
                a("v_permlane32_swap_b32 v%d, v%d" % (b, b + 2))
                a("v_permlane32_swap_b32 v%d, v%d" % (b + 1, b + 3))
                a("buffer_store_dwordx4 v[%d:%d], v%d, s[24:27], 0 offen offset:%d" % (b, b + 3, 3 + sub, pr * 32))
            a("s_nop 1")
        if rt < 3:
            a("v_add_u32 v3, 0x%x, v3" % (32 * 256))
            a("v_add_u32 v4, 0x%x, v4" % (32 * 256))
    a("s_branch k1_fin")
    a.label("k1_epi_gu")
    add64(a, 40, 6, 7, WS_H)
    srd(a, 24, 40, 41, 2048 * 1792 * 2)
    a("s_sub_u32 s38, s16, 16")
    a("s_lshl_b32 s38, s38, 19")
    a("v_add_u32 v3, s38, v3")
    a("s_mov_b32 s46, 0x3d372713")
    a("s_mov_b32 s47, 0xc0135761")
    for rt in range(4):
        accg = rt * 16
        accu = (4 + rt) * 16
        for i in range(16):
            a("v_accvgpr_read_b32 v%d, a%d" % (8 + i, accg + i))
            a("v_accvgpr_read_b32 v%d, a%d" % (24 + i, accu + i))
        for i in range(16):
            g, u, z = 8 + i, 24 + i, 40 + i
            bf16r(a, g, g)
            bf16r(a, u, u)
            a("v_mul_f32 v%d, v%d, v%d" % (z, g, g))
            a("v_fma_f32 v%d, v%d, s46, 1.0" % (z, z))
            a("v_mul_f32 v%d, v%d, v%d" % (z, z, g))
            a("v_mul_f32 v%d, s47, v%d" % (z, z))
            a("v_exp_f32 v%d, v%d" % (z, z))
        for i in range(16):
            a("v_add_f32 v%d, 1.0, v%d" % (40 + i, 40 + i))
            a("v_rcp_f32 v%d, v%d" % (40 + i, 40 + i))
        for i in range(16):
            g, u, z = 8 + i, 24 + i, 40 + i
            a("v_mul_f32 v%d, v%d, v%d" % (g, g, z))
            bf16r(a, g, g)
            a("v_mul_f32 v%d, v%d, v%d" % (g, g, u))
        for i in range(8):
            a("v_cvt_pk_bf16_f32 v%d, v%d, v%d" % (56 + i, 8 + 2 * i, 9 + 2 * i))
        a("s_nop 1")
        for pr in range(2):
            b = 56 + 4 * pr
            a("v_permlane32_swap_b32 v%d, v%d" % (b, b + 2))
            a("v_permlane32_swap_b32 v%d, v%d" % (b + 1, b + 3))
            a("buffer_store_dwordx4 v[%d:%d], v3, s[24:27], 0 offen offset:%d" % (b, b + 3, pr * 32))
        a("s_nop 1")
        if rt < 3:
            a("v_add_u32 v3, 0x%x, v3" % (32 * 256))
    a("s_branch k1_fin")
    a.label("k1_relayout")
    a("s_load_dwordx2 s[4:5], s[0:1], 32")
    a("s_load_dwordx2 s[8:9], s[0:1], 64")
    a("s_load_dwordx2 s[6:7], s[0:1], 88")
    a("v_lshrrev_b32 v1, 6, v0")
    a("v_and_b32 v0, 63, v0")
    a("s_nop 0")
    a("v_readfirstlane_b32 s18, v1")
    a("s_sub_u32 s38, s16, 30")
    a("s_lshl_b32 s39, s17, 1")
    a("s_add_u32 s38, s38, s39")
    a("s_lshl_b32 s38, s38, 3")
    a("s_add_u32 s38, s38, s18")
    a("s_mul_i32 s40, s38, 46")
    a("s_waitcnt lgkmcnt(0)")
    add64(a, 42, 6, 7, WS_W)
    srd(a, 28, 42, 43, 4 * 5888 * 256)
    a("s_and_b32 s5, s5, 0xffff")
    a("s_and_b32 s9, s9, 0xffff")
    a("v_lshlrev_b32 v1, 4, v0")
    a("v_lshrrev_b32 v2, 4, v0")
    a("s_mov_b32 s38, 0x%x" % (5888 * 256))
    a("v_mul_lo_u32 v2, v2, s38")
    a("v_and_b32 v3, 15, v0")
    a("v_lshl_add_u32 v2, v3, 4, v2")
    a("s_mov_b32 s41, 0")
    a("s_mov_b32 s47, 0x00020000")
    a("s_mov_b32 s49, 0x1c0000")
    a.label("k1_rl_loop")
    for u in range(23):
        a("s_add_u32 s38, s40, %d" % u)
        a("s_cmp_lt_u32 s38, 4096")
        a("s_cselect_b32 s44, s4, s8")
        a("s_cselect_b32 s45, s5, s9")
        a("s_cselect_b32 s39, 0, 0x1000")
        a("s_cselect_b32 s46, 0x400000, s49")
        a("s_sub_u32 s39, s38, s39")
        a("s_lshl_b32 s39, s39, 10")
        a("buffer_load_dwordx4 v[%d:%d], v1, s[44:47], s39 offen" % (8 + 4 * u, 11 + 4 * u))
    for u in range(23):
        a("s_add_u32 s38, s40, %d" % u)
        a("s_lshl_b32 s38, s38, 8")
        a("s_waitcnt vmcnt(22)")
        a("buffer_store_dwordx4 v[%d:%d], v2, s[28:31], s38 offen" % (8 + 4 * u, 11 + 4 * u))
    a("s_waitcnt vmcnt(0)")
    a("s_add_u32 s40, s40, 23")
    a("s_add_u32 s41, s41, 1")
    a("s_cmp_lt_u32 s41, 2")
    a("s_cbranch_scc1 k1_rl_loop")
    a.label("k1_fin")
    stamp_exit(a, "k1")
    a.label("k1_done")
    a("s_endpgm")
    return kernel_desc(name, 112, 128)


def gen_attn(a):
    name = "attn_kernel"
    kernel_begin(a, name)
    stamp_entry(a)
    TLOG = 60
    A_O, A_Q, A_F = 0, 128, 192
    V_S, V_P, V_T, V_TS, V_L, V_MC, V_KA, V_VA, V_KD, V_VD = 0, 64, 96, 104, 108, 110, 112, 120, 124, 128
    V_X = 130
    V_LANE = 140
    V_NM = 144

    a("s_cmp_ge_u32 s2, 256")
    a("s_cbranch_scc1 at_done")
    a("s_load_dwordx4 s[4:7], s[0:1], 8")
    a("s_load_dwordx2 s[8:9], s[0:1], 88")
    a("s_and_b32 s38, s2, 7")
    a("s_lshr_b32 s39, s2, 3")
    a("s_and_b32 s40, s39, 3")
    a("s_lshl_b32 s16, s38, 2")
    a("s_add_u32 s16, s16, s40")
    a("s_lshr_b32 s17, s39, 2")
    a("v_lshrrev_b32 v1, 6, v0")
    a("v_and_b32 v%d, 63, v0" % V_LANE)
    a("v_mov_b32 v0, v%d" % V_LANE)
    a("s_nop 0")
    a("v_readfirstlane_b32 s18, v1")
    a("s_waitcnt lgkmcnt(0)")
    srd(a, 20, 4, 5, 32 * 2048 * 128 * 2)
    srd(a, 24, 6, 7, 32 * 2048 * 128 * 2)
    a("s_lshl_b32 s28, s16, 19")
    a("s_lshl_b32 s38, s18, 12")
    a("s_add_u32 s28, s28, s38")
    a("s_mov_b32 s29, s28")
    a("s_mov_b32 s31, s38")
    a("s_add_u32 s32, s38, 0x10000")
    a("s_mov_b32 s36, 0x3e0293ee")
    a("s_mov_b32 s37, 0x%x" % ((127 + TLOG) << 23))
    a("s_mov_b32 s48, 0x4000")
    a("s_mov_b32 s49, 0x%x" % ((-3 * 16384) & 0xffffffff))
    a("v_lshrrev_b32 v1, 4, v0")
    a("v_and_b32 v2, 15, v0")
    for j in range(4):
        a("v_add_u32 v3, %d, v1" % (4 * j))
        a("v_xor_b32 v3, v2, v3")
        a("v_lshlrev_b32 v3, 4, v3")
        a("v_lshl_add_u32 v%d, v1, 8, v3" % (V_KD + j))
    a("v_lshlrev_b32 v3, 2, v1")
    a("v_xor_b32 v3, v2, v3")
    a("v_lshlrev_b32 v3, 4, v3")
    a("v_lshl_add_u32 v%d, v1, 8, v3" % V_VD)
    a("v_and_b32 v1, 31, v0")
    a("v_lshrrev_b32 v2, 5, v0")
    a("v_and_b32 v3, 15, v0")
    a("v_lshlrev_b32 v4, 8, v1")
    for ds in range(8):
        a("v_add_u32 v5, %d, v2" % (2 * ds))
        a("v_xor_b32 v5, v5, v3")
        a("v_lshl_add_u32 v%d, v5, 4, v4" % (V_KA + ds))
    a("v_lshrrev_b32 v1, 4, v0")
    a("v_and_b32 v1, 1, v1")
    a("v_lshrrev_b32 v3, 2, v3")
    a("v_and_b32 v4, 3, v0")
    a("v_lshrrev_b32 v5, 1, v4")
    a("v_lshl_add_u32 v5, v1, 1, v5")
    a("v_lshl_add_u32 v6, v2, 2, v3")
    a("v_lshlrev_b32 v6, 8, v6")
    a("v_and_b32 v4, 1, v4")
    a("v_lshl_add_u32 v6, v4, 3, v6")
    a("v_add_u32 v6, 0x1c000, v6")
    for dt in range(4):
        a("v_xor_b32 v7, %d, v3" % dt)
        a("v_lshl_add_u32 v7, v7, 2, v5")
        a("v_lshl_add_u32 v%d, v7, 4, v6" % (V_VA + dt))

    def dma(which):
        ins = []
        if which == "K":
            ins.append("s_add_u32 m0, s31, s33")
            for j in range(4):
                ins.append("buffer_load_dwordx4 v%d, s[20:23], s28 offen offset:%d lds" % (V_KD + j, j * 1024))
            ins.append("s_add_u32 s28, s28, 0x4000")
            ins.append("s_add_u32 s33, s33, 0x4000")
            ins.append("s_and_b32 s33, s33, 0xffff")
        else:
            ins.append("s_add_u32 m0, s32, s34")
            for j in range(4):
                ins.append("buffer_load_dwordx4 v%d, s[24:27], s29 offen offset:%d lds" % (V_VD, j * 1024))
            ins.append("s_add_u32 s29, s29, 0x4000")
            ins.append("s_add_u32 s34, s34, 0x4000")
            ins.append("s_and_b32 s34, s34, 0xffff")
        return ins

    def emit_list(lst):
        for ins in lst:
            a(ins)
            if ins.startswith("s_add_u32 m0"):
                a("s_nop 0")

    add64(a, 40, 8, 9, WS_Q)
    srd(a, 44, 40, 41, 2048 * 4096 * 2)
    a("v_and_b32 v1, 31, v0")
    a("s_lshl_b32 s38, s17, 8")
    a("s_lshl_b32 s39, s18, 6")
    a("s_add_u32 s38, s38, s39")
    a("v_add_u32 v1, s38, v1")
    a("v_lshlrev_b32 v1, 8, v1")
    a("v_lshl_add_u32 v1, v2, 4, v1")
    a("s_lshl_b32 s38, s16, 19")
    a("v_add_u32 v%d, s38, v1" % (V_X + 8))
    a("v_add_u32 v%d, 0x2000, v%d" % (V_X + 9, V_X + 8))
    for qt in range(2):
        for ds in range(8):
            r = A_Q + (qt * 8 + ds) * 4
            a("buffer_load_dwordx4 a[%d:%d], v%d, s[44:47], 0 offen offset:%d" % (r, r + 3, V_X + 8 + qt, ds * 32))
    a("s_mov_b32 s33, 0")
    a("s_mov_b32 s34, 0xc000")
    emit_list(dma("K"))
    emit_list(dma("V"))
    a("s_sub_u32 s29, s29, 0x4000")
    emit_list(dma("K"))
    emit_list(dma("V"))
    emit_list(dma("K"))
    emit_list(dma("V"))
    for i in range(128):
        a("v_accvgpr_write_b32 a%d, 0" % (A_O + i))
    for i in range(16):
        a("v_mov_b32 v%d, 0" % (V_P + 16 + i))
    a("v_mov_b32 v%d, 0" % V_L)
    a("v_mov_b32 v%d, 0" % (V_L + 1))
    a("v_mov_b32 v%d, 0xff800000" % V_MC)
    a("v_mov_b32 v%d, 0xff800000" % (V_MC + 1))
    a("s_waitcnt vmcnt(20)")
    a("s_barrier")

    def kread(slot, ds, half):
        r = A_F + slot * 4
        return "ds_read_b128 a[%d:%d], v%d offset:%d" % (r, r + 3, V_KA + ds, half * 8192)

    def vread(slot, dt, ks, half):
        r = A_F + slot * 4
        return ["ds_read_b64_tr_b16 a[%d:%d], v%d offset:%d" % (
            r + 2 * p, r + 2 * p + 1, V_VA + dt, (32 * half + 16 * ks + 8 * p) * 256) for p in range(2)]

    def qk_mfma(slot, nb, qt, ds, czero=False):
        d = V_S + (nb * 2 + qt) * 16
        r = A_F + slot * 4
        q = A_Q + (qt * 8 + ds) * 4
        if ds == 0:
            c = "0" if czero else "v[%d:%d]" % (V_NM + qt * 16, V_NM + qt * 16 + 15)
        else:
            c = "v[%d:%d]" % (d, d + 15)
        return "v_mfma_f32_32x32x16_bf16 v[%d:%d], a[%d:%d], a[%d:%d], %s" % (d, d + 15, r, r + 3, q, q + 3, c)

    def pv_mfma(slot, pb, qt, dt, ks):
        o = A_O + (qt * 4 + dt) * 16
        r = A_F + slot * 4
        p = V_P + (pb * 2 + qt) * 8 + ks * 4
        return "v_mfma_f32_32x32x16_bf16 a[%d:%d], a[%d:%d], v[%d:%d], a[%d:%d]" % (o, o + 15, r, r + 3, p, p + 3, o, o + 15)

    for ds in range(8):
        a(kread(ds % 4, ds, 0))
        if ds % 4 == 3:
            a("s_waitcnt lgkmcnt(0)")
            for d2 in range(ds - 3, ds + 1):
                for qt in range(2):
                    a(qk_mfma(d2 % 4, 0, qt, d2, czero=True))
            a("s_nop 7")
    a("s_nop 15")
    for qt in range(2):
        s0 = V_S + qt * 16
        x = V_X
        a("v_max3_f32 v%d, v%d, v%d, v%d" % (x, s0, s0 + 1, s0 + 2))
        for i in range(3, 15, 2):
            a("v_max3_f32 v%d, v%d, v%d, v%d" % (x, x, s0 + i, s0 + i + 1))
        a("v_max_f32 v%d, v%d, v%d" % (x, x, s0 + 15))
        a("v_mov_b32 v%d, v%d" % (x + 1, x))
        a("s_nop 1")
        a("v_permlane32_swap_b32 v%d, v%d" % (x, x + 1))
        a("s_nop 1")
        a("v_max_f32 v%d, v%d, v%d" % (x, x, x + 1))
        for i in range(16):
            a("v_sub_f32 v%d, v%d, v%d" % (s0 + i, s0 + i, x))
            a("v_sub_f32 v%d, 0, v%d" % (V_NM + qt * 16 + i, x))
    a("s_waitcnt vmcnt(8)")
    a("s_barrier")
    for p in range(3):
        a(kread(p, p, 1))

    def softmax_fill(b, first_ts_mov=True):
        st = []
        np_ = 16
        def regs(k):
            qt, kk = k // 8, k % 8
            s0 = V_S + (b * 2 + qt) * 16 + 2 * kk
            t0 = V_T + (k % 4) * 2
            return qt, kk, s0, t0
        def B(k):
            qt, kk, s0, t0 = regs(k)
            return ["v_exp_f32 v%d, v%d" % (t0, s0), "v_exp_f32 v%d, v%d" % (t0 + 1, s0 + 1)]
        def C(k):
            qt, kk, s0, t0 = regs(k)
            ta, tb = V_TS + qt * 2, V_TS + qt * 2 + 1
            if kk == 0:
                o = ["v_mov_b32 v%d, v%d" % (ta, t0), "v_mov_b32 v%d, v%d" % (tb, t0 + 1)]
            elif "att_pkadd" in OPT:
                o = ["v_pk_add_f32 v[%d:%d], v[%d:%d], v[%d:%d]" % (ta, tb, ta, tb, t0, t0 + 1)]
            else:
                o = ["v_add_f32 v%d, v%d, v%d" % (ta, ta, t0), "v_add_f32 v%d, v%d, v%d" % (tb, tb, t0 + 1)]
            o.append("v_cvt_pk_bf16_f32 v%d, v%d, v%d" % (V_P + (b * 2 + qt) * 8 + kk, t0, t0 + 1))
            return o
        st += B(0) + B(1)
        for k in range(np_):
            if k + 2 < np_:
                st += B(k + 2)
            st += C(k)
        return st

    if "att_stamp" in OPT:
        a("s_memtime s[64:65]")
        a("s_memrealtime s[66:67]")
        a("s_waitcnt lgkmcnt(0)")
    a("s_mov_b32 s35, 0")
    a("s_mov_b32 s46, 0")
    a("s_mov_b32 s47, 3")
    stamp_mark(a, 0)
    a.label("at_loop")
    for step in range(2):
        b = step
        nb = 1 - b
        khalf = 1 - step
        vhalf = 1 - step
        valu = softmax_fill(b)
        extra = {p: [] for p in range(16)}
        if step == 0:
            d = dma("K")
            extra[1] += d[0:2]
            extra[2] += d[2:3]
            extra[3] += d[3:4]
            extra[4] += d[4:]
            upd = ["s_add_u32 s46, s46, 1", "s_and_b32 s46, s46, 3", "s_cmp_eq_u32 s46, 0",
                   "s_cselect_b32 s50, s49, s48"]
            extra[8] += upd + ["v_add_u32 v%d, s50, v%d" % (V_KA + i, V_KA + i) for i in range(4)]
            extra[9] += ["v_add_u32 v%d, s50, v%d" % (V_KA + i, V_KA + i) for i in range(4, 8)]
        else:
            d = dma("V")
            extra[1] += d[0:2]
            extra[2] += d[2:3]
            extra[3] += d[3:4]
            extra[4] += d[4:]
            upd = ["s_add_u32 s47, s47, 1", "s_and_b32 s47, s47, 3", "s_cmp_eq_u32 s47, 0",
                   "s_cselect_b32 s50, s49, s48"]
            extra[0] += upd + ["v_add_u32 v%d, s50, v%d" % (V_VA + i, V_VA + i) for i in range(4)]
        if "att_nodma" in OPT:
            for p in range(16):
                extra[p] = [x for x in extra[p] if not x.startswith("buffer_load")]
        if "att_novalu" in OPT:
            valu = valu[-6:]
        nvalu = len(valu)
        vi = 0

        def cost(ins):
            if ins.startswith("v_exp"):
                return 8
            if ins.startswith("buffer_load"):
                return DMA_COST
            return 4

        def nops(pp):
            return 1 if (pp % 16) < 8 else 2

        gaps = []
        for p in range(16):
            for qt in range(2):
                fixed = []
                if qt == 0:
                    pp = p + 3
                    if pp < 8:
                        fixed.append(kread(pp % 4, pp, khalf))
                    elif pp < 16:
                        fixed += vread(pp % 4, (pp - 8) >> 1, (pp - 8) & 1, vhalf)
                    else:
                        fixed.append(kread(pp % 4, pp - 16, step))
                else:
                    fixed += extra[p]
                    if p < 15:
                        fixed.append("s_waitcnt lgkmcnt(%d)" % (nops(p + 2) + nops(p + 3)))
                gaps.append(fixed)
        total = sum(cost(x) for g in gaps for x in g) + sum(cost(x) for x in valu)
        tgt_per = total / 31.0
        cum = 0
        a("s_waitcnt lgkmcnt(%d)" % (nops(1) + nops(2)))
        for gi, fixed in enumerate(gaps):
            p, qt = gi >> 1, gi & 1
            slot = p % 4
            if p < 8:
                a(qk_mfma(slot, nb, qt, p))
            else:
                a(pv_mfma(slot, nb, qt, (p - 8) >> 1, (p - 8) & 1))
            wait = [x for x in fixed if x.startswith("s_waitcnt")]
            pre = [x for x in fixed if not x.startswith("s_waitcnt")]
            emit_list(pre)
            cum += sum(cost(x) for x in fixed)
            while vi < nvalu and cum + cost(valu[vi]) * 0.5 <= tgt_per * (gi + 1):
                a(valu[vi])
                cum += cost(valu[vi])
                vi += 1
            emit_list(wait)
        while vi < nvalu:
            a(valu[vi])
            vi += 1
        a("v_add_f32 v%d, v%d, v%d" % (V_TS, V_TS, V_TS + 1))
        a("v_add_f32 v%d, v%d, v%d" % (V_TS + 2, V_TS + 2, V_TS + 3))
        a("v_max_f32 v%d, v%d, v%d" % (V_X, V_TS, V_TS + 2))
        a("v_cmp_nge_f32 vcc, s37, v%d" % V_X)
        if "att_noslow" not in OPT:
            a("s_cbranch_vccnz at_slow%d" % b)
        a.label("at_back%d" % b)
        a("v_add_f32 v%d, v%d, v%d" % (V_L, V_L, V_TS))
        a("v_add_f32 v%d, v%d, v%d" % (V_L + 1, V_L + 1, V_TS + 2))
    a("s_waitcnt vmcnt(8)")
    if "att_nobar" not in OPT:
        a("s_barrier")
    a("s_add_u32 s35, s35, 1")
    a("s_cmp_lt_u32 s35, 32")
    a("s_cbranch_scc1 at_loop")
    stamp_mark(a, 1)
    a("s_waitcnt lgkmcnt(0)")
    if "att_stamp" in OPT:
        a("s_memtime s[68:69]")
        a("s_memrealtime s[70:71]")
        a("s_load_dwordx2 s[72:73], s[0:1], 80")
        a("s_waitcnt lgkmcnt(0)")
        a("s_sub_u32 s68, s68, s64")
        a("s_sub_u32 s70, s70, s66")
        a("s_mov_b32 s76, s72")
        a("s_and_b32 s77, s73, 0xffff")
        a("s_mov_b32 s78, 256")
        a("s_mov_b32 s79, 0x00020000")
        a("s_lshl_b32 s74, s2, 2")
        a("s_add_u32 s74, s74, s18")
        a("s_cmp_lt_u32 s74, 32")
        a("s_cbranch_scc0 at_nostamp")
        a("s_lshl_b32 s74, s74, 3")
        a("v_mov_b32 v%d, s68" % (V_X + 2))
        a("v_mov_b32 v%d, s70" % (V_X + 3))
        a("v_mov_b32 v%d, s74" % (V_X + 4))
        a("s_nop 4")
        a("buffer_store_dwordx2 v[%d:%d], v%d, s[76:79], 0 offen" % (V_X + 2, V_X + 3, V_X + 4))
        a.label("at_nostamp")
    for grp in range(2):
        for pp in range(4):
            p = grp * 4 + pp
            for ins in vread(pp, p >> 1, p & 1, 1):
                a(ins)
        a("s_waitcnt lgkmcnt(0)")
        for pp in range(4):
            p = grp * 4 + pp
            for qt in range(2):
                a(pv_mfma(pp, 1, qt, p >> 1, p & 1))
        a("s_nop 7")
    a("s_nop 15")
    add64(a, 40, 8, 9, WS_O)
    srd(a, 44, 40, 41, 2048 * 4096 * 2)
    for qt in range(2):
        a("v_mov_b32 v%d, v%d" % (V_X, V_L + qt))
        a("s_nop 1")
        a("v_permlane32_swap_b32 v%d, v%d" % (V_L + qt, V_X))
        a("s_nop 1")
        a("v_add_f32 v%d, v%d, v%d" % (V_X, V_X, V_L + qt))
        a("v_rcp_f32 v%d, v%d" % (V_X + 1, V_X))
        a("s_nop 0")
        for dt in range(4):
            o = A_O + (qt * 4 + dt) * 16
            for pr in range(2):
                for i in range(8):
                    a("v_accvgpr_read_b32 v%d, a%d" % (8 + i, o + pr * 8 + i))
                for i in range(8):
                    a("v_mul_f32 v%d, v%d, v%d" % (8 + i, 8 + i, V_X + 1))
                for i in range(4):
                    a("v_cvt_pk_bf16_f32 v%d, v%d, v%d" % (16 + i, 8 + 2 * i, 9 + 2 * i))
                a("s_nop 1")
                a("v_permlane32_swap_b32 v16, v18")
                a("v_permlane32_swap_b32 v17, v19")
                a("buffer_store_dwordx4 v[16:19], v%d, s[44:47], 0 offen offset:%d%s" % (V_X + 8 + qt, dt * 64 + pr * 32, STF))
                a("s_nop 1")
    a("s_branch at_fin")
    for b in range(2):
        a.label("at_slow%d" % b)
        a("s_nop 15")
        for qt in range(2):
            s0 = V_S + (b * 2 + qt) * 16
            x = V_X
            a("v_max3_f32 v%d, v%d, v%d, v%d" % (x, s0, s0 + 1, s0 + 2))
            for i in range(3, 15, 2):
                a("v_max3_f32 v%d, v%d, v%d, v%d" % (x, x, s0 + i, s0 + i + 1))
            a("v_max_f32 v%d, v%d, v%d" % (x, x, s0 + 15))
            a("v_mov_b32 v%d, v%d" % (x + 1, x))
            a("s_nop 1")
            a("v_permlane32_swap_b32 v%d, v%d" % (x, x + 1))
            a("s_nop 1")
            a("v_max_f32 v%d, v%d, v%d" % (x, x, x + 1))
            a("v_max_f32 v%d, 0, v%d" % (x, x))
            a("v_sub_f32 v%d, 0, v%d" % (x + 1, x))
            a("v_exp_f32 v%d, v%d" % (x + 1, x + 1))
            s1 = V_S + ((1 - b) * 2 + qt) * 16
            for i in range(16):
                a("v_sub_f32 v%d, v%d, v%d" % (s0 + i, s0 + i, x))
                a("v_sub_f32 v%d, v%d, v%d" % (s1 + i, s1 + i, x))
                a("v_sub_f32 v%d, v%d, v%d" % (V_NM + qt * 16 + i, V_NM + qt * 16 + i, x))
            a("v_mul_f32 v%d, v%d, v%d" % (V_L + qt, V_L + qt, x + 1))
            for blk in range(16):
                o = A_O + qt * 64 + blk * 4
                for i in range(4):
                    a("v_accvgpr_read_b32 v%d, a%d" % (x + 2 + i, o + i))
                for i in range(4):
                    a("v_mul_f32 v%d, v%d, v%d" % (x + 2 + i, x + 2 + i, x + 1))
                for i in range(4):
                    a("v_accvgpr_write_b32 a%d, v%d" % (o + i, x + 2 + i))
        for ins in softmax_fill(b):
            a(ins)
        a("v_add_f32 v%d, v%d, v%d" % (V_TS, V_TS, V_TS + 1))
        a("v_add_f32 v%d, v%d, v%d" % (V_TS + 2, V_TS + 2, V_TS + 3))
        a("s_nop 1")
        a("s_branch at_back%d" % b)
    a.label("at_fin")
    stamp_exit(a, "at")
    a.label("at_done")
    a("s_endpgm")
    return kernel_desc(name, 256, 256)


def gen_k3(a):
    name = "out_kernel"
    kernel_begin(a, name)
    stamp_entry(a)
    STAGE = 32768
    R = K3_R
    V_AD, V_BD = 200, 204
    V_XA, V_WA = 212, 214
    V_LANE = 216
    a("s_cmp_ge_u32 s2, 256")
    a("s_cbranch_scc1 k3_done")
    a("s_load_dwordx2 s[4:5], s[0:1], 0")
    a("s_load_dwordx2 s[10:11], s[0:1], 72")
    a("s_load_dwordx2 s[12:13], s[0:1], 88")
    a("s_and_b32 s38, s2, 7")
    a("s_lshr_b32 s39, s2, 3")
    a("s_and_b32 s40, s39, 3")
    a("s_lshl_b32 s16, s38, 2")
    a("s_add_u32 s16, s16, s40")
    a("s_lshr_b32 s17, s2, 5")
    a("v_lshrrev_b32 v1, 6, v0")
    a("v_and_b32 v0, 63, v0")
    a("v_mov_b32 v%d, v0" % V_LANE)
    a("s_nop 0")
    a("v_readfirstlane_b32 s18, v1")
    a("s_waitcnt lgkmcnt(0)")
    add64(a, 40, 12, 13, WS_O)
    srd(a, 20, 40, 41, 46 * 524288)
    add64(a, 40, 12, 13, WS_W)
    srd(a, 24, 40, 41, 4 * 5888 * 256)
    a("s_lshl_b32 s38, s16, 6")
    a("s_lshl_b32 s39, s18, 4")
    a("s_add_u32 s38, s38, s39")
    a("s_lshl_b32 s28, s38, 8")
    a("s_lshr_b32 s38, s17, 1")
    a("s_mul_i32 s29, s38, 0x%x" % (5888 * 256))
    a("s_and_b32 s38, s17, 1")
    a("s_lshl_b32 s38, s38, 7")
    a("s_add_u32 s29, s29, s38")
    a("s_lshl_b32 s38, s18, 13")
    a("s_add_u32 s29, s29, s38")
    a("s_lshl_b32 s31, s18, 12")
    a("s_add_u32 s32, s31, 0x4000")
    a("s_mov_b32 s48, 0x%x" % STAGE)
    a("s_mov_b32 s49, 0x%x" % ((-(R - 1) * STAGE) & 0xffffffff))
    a("v_lshrrev_b32 v1, 4, v0")
    a("v_and_b32 v2, 15, v0")
    for j in range(4):
        a("v_add_u32 v3, %d, v1" % (4 * j))
        a("v_xor_b32 v4, v2, v3")
        a("v_lshlrev_b32 v4, 4, v4")
        a("v_lshl_add_u32 v%d, v1, 8, v4" % (V_AD + j))
    a("v_lshrrev_b32 v1, 3, v0")
    a("v_and_b32 v2, 7, v0")
    a("v_lshrrev_b32 v3, 4, v0")
    a("v_and_b32 v3, 1, v3")
    a("v_lshlrev_b32 v3, 2, v3")
    a("v_xor_b32 v2, v2, v3")
    a("v_lshlrev_b32 v2, 4, v2")
    a("v_lshl_add_u32 v2, v1, 8, v2")
    for j in range(4):
        a("v_add_u32 v%d, %d, v2" % (V_BD + j, 8 * j * 256 - 1024 * j))

    def dma_tile():
        ins = []
        ins.append("s_add_u32 m0, s31, s33")
        for j in range(4):
            ins.append("buffer_load_dwordx4 v%d, s[20:23], s28 offen offset:%d lds" % (V_AD + j, j * 1024))
        ins.append("s_add_u32 m0, s32, s33")
        for j in range(4):
            ins.append("buffer_load_dwordx4 v%d, s[24:27], s29 offen offset:%d lds" % (V_BD + j, j * 1024))
        ins.append("s_add_u32 s28, s28, 0x80000")
        ins.append("s_add_u32 s29, s29, 0x8000")
        ins.append("s_add_u32 s33, s33, 0x%x" % STAGE)
        ins.append("s_cmp_eq_u32 s33, 0x%x" % (STAGE * R))
        ins.append("s_cselect_b32 s33, 0, s33")
        return ins

    def emit1(ins):
        a(ins)
        if ins.startswith("s_add_u32 m0"):
            a("s_nop 0")

    a("s_mov_b32 s33, 0")
    for _ in range(R - 1):
        for ins in dma_tile():
            emit1(ins)
    a("v_and_b32 v1, 31, v0")
    a("v_lshrrev_b32 v2, 5, v0")
    a("v_and_b32 v3, 15, v0")
    a("v_lshlrev_b32 v4, 8, v1")
    a("s_lshl_b32 s38, s18, 1")
    a("v_add_u32 v5, s38, v2")
    a("v_xor_b32 v6, v5, v3")
    a("v_lshl_add_u32 v%d, v6, 4, v4" % V_XA)
    a("v_xor_b32 v6, 8, v6")
    a("v_lshl_add_u32 v%d, v6, 4, v4" % (V_XA + 1))
    a("v_lshrrev_b32 v1, 4, v0")
    a("v_and_b32 v1, 1, v1")
    a("v_lshrrev_b32 v3, 2, v3")
    a("v_and_b32 v4, 3, v0")
    a("v_lshrrev_b32 v5, 1, v4")
    a("v_lshl_add_u32 v5, v1, 1, v5")
    a("v_lshrrev_b32 v6, 1, v3")
    a("v_lshlrev_b32 v6, 2, v6")
    a("v_xor_b32 v5, v5, v6")
    a("v_xor_b32 v6, 4, v5")
    a("v_lshl_add_u32 v7, v2, 3, v3")
    a("s_lshl_b32 s38, s18, 4")
    a("v_add_u32 v7, s38, v7")
    a("v_lshlrev_b32 v7, 7, v7")
    a("v_and_b32 v4, 1, v4")
    a("v_lshl_add_u32 v7, v4, 3, v7")
    a("v_add_u32 v7, 0x4000, v7")
    a("v_lshl_add_u32 v%d, v5, 4, v7" % V_WA)
    a("v_lshl_add_u32 v%d, v6, 4, v7" % (V_WA + 1))
    for i in range(128):
        a("v_accvgpr_write_b32 a%d, 0" % i)
    a("s_mov_b32 s46, 0")

    def frag_reads2(par):
        base = par * 32
        out = []
        for kk in range(2):
            b = base + kk * 16
            ins = []
            for rt in range(2):
                ins.append("ds_read_b128 v[%d:%d], v%d offset:%d" % (b + 8 + rt * 4, b + 11 + rt * 4, V_XA + kk, rt * 8192))
            for nt in range(2):
                for p in range(2):
                    r0 = b + nt * 4 + p * 2
                    ins.append("ds_read_b64_tr_b16 v[%d:%d], v%d offset:%d" % (r0, r0 + 1, V_WA + nt, kk * 8192 + p * 512))
            out += [ins[0], ins[2], ins[3], ins[1], ins[4], ins[5]]
        return out

    def mfmas(par, phase):
        out = []
        for kk in range(2):
            for nt in range(2):
                for rt in range(2):
                    acc = phase * 64 + (nt * 2 + rt) * 16
                    b = par * 32 + kk * 16
                    out.append("v_mfma_f32_32x32x16_bf16 a[%d:%d], v[%d:%d], v[%d:%d], a[%d:%d]" % (
                        acc, acc + 15, b + nt * 4, b + nt * 4 + 3, b + 8 + rt * 4, b + 11 + rt * 4, acc, acc + 15))
        return out

    adv = ["s_add_u32 s46, s46, 1", "s_cmp_eq_u32 s46, %d" % R, "s_cselect_b32 s50, s49, s48",
           "s_cselect_b32 s46, 0, s46"] + ["v_add_u32 v%d, s50, v%d" % (r, r) for r in (V_XA, V_XA + 1, V_WA, V_WA + 1)]

    def body(par, mphase):
        a("s_waitcnt vmcnt(%d) lgkmcnt(0)" % (8 * (R - 2)))
        a("s_barrier")
        rd = frag_reads2(par)
        mf = mfmas(1 - par, mphase) if mphase is not None else []
        dm = dma_tile()
        for ins in rd[:6]:
            a(ins)
        mi, ri = 0, 6
        for ins in dm:
            emit1(ins)
            if ins.startswith("buffer_load"):
                if mi < len(mf):
                    a(mf[mi])
                    mi += 1
                if ri < len(rd):
                    a(rd[ri])
                    ri += 1
        for ins in adv:
            a(ins)

    stamp_mark(a, 0)
    body(0, None)
    a("s_mov_b32 s35, 0")
    a.label("k3_loop0")
    body(1, 0)
    body(0, 0)
    a("s_add_u32 s35, s35, 1")
    a("s_cmp_lt_u32 s35, 16")
    a("s_cbranch_scc1 k3_loop0")
    a("s_mov_b32 s35, 0")
    a.label("k3_loop1")
    body(1, 1)
    body(0, 1)
    a("s_add_u32 s35, s35, 1")
    a("s_cmp_lt_u32 s35, 7")
    a("s_cbranch_scc1 k3_loop1")
    stamp_mark(a, 1)
    a("s_waitcnt vmcnt(0) lgkmcnt(0)")
    a("s_barrier")
    a("s_nop 15")
    a("v_mov_b32 v0, v%d" % V_LANE)
    a("v_lshlrev_b32 v1, 4, v0")
    a("s_lshl_b32 s38, s18, 15")
    a("v_add_u32 v1, s38, v1")
    for ph in range(2):
        for tile in range(4):
            for g in range(4):
                r = ph * 64 + tile * 16 + g * 4
                a("ds_write_b128 v1, a[%d:%d] offset:%d" % (r, r + 3, (ph * 4 + tile) * 4096 + g * 1024))
    a("s_waitcnt lgkmcnt(0)")
    a("s_barrier")
    a("v_lshlrev_b32 v1, 4, v0")
    a("s_lshl_b32 s38, s18, 12")
    a("v_add_u32 v1, s38, v1")
    a("v_add_u32 v2, 0x10000, v1")
    for ph in range(2):
        for src in range(4):
            for g in range(4):
                d = 64 + ph * 64 + src * 16 + g * 4
                a("ds_read_b128 v[%d:%d], v%d offset:%d" % (d, d + 3, 1 + (src >> 1), (src & 1) * 32768 + ph * 16384 + g * 1024))
    srd(a, 20, 4, 5, 2048 * 512 * 2)
    srd(a, 24, 10, 11, 2048 * 512 * 2)
    a("v_and_b32 v1, 31, v0")
    a("v_lshrrev_b32 v2, 5, v0")
    a("s_and_b32 s38, s18, 1")
    a("s_lshl_b32 s38, s38, 5")
    a("s_lshl_b32 s39, s16, 6")
    a("s_add_u32 s38, s38, s39")
    a("v_add_u32 v1, s38, v1")
    a("v_lshlrev_b32 v1, 10, v1")
    a("s_lshr_b32 s38, s18, 1")
    a("s_lshl_b32 s38, s38, 6")
    a("s_lshl_b32 s39, s17, 7")
    a("s_add_u32 s38, s38, s39")
    a("v_add_u32 v1, s38, v1")
    a("v_lshl_add_u32 v3, v2, 3, v1")
    a("v_lshl_add_u32 v4, v2, 4, v1")
    for q in range(4):
        a("buffer_load_dwordx2 v[%d:%d], v3, s[20:23], 0 offen offset:%d" % (192 + 2 * q, 193 + 2 * q, q * 16))
    a("s_waitcnt lgkmcnt(0)")
    for ph in range(2):
        b = 64 + ph * 64
        for i in range(16):
            d = 32 + ph * 16 + i
            a("v_add_f32 v%d, v%d, v%d" % (d, b + i, b + 16 + i))
            a("v_add_f32 v%d, v%d, v%d" % (b + 32 + i, b + 32 + i, b + 48 + i))
            a("v_add_f32 v%d, v%d, v%d" % (d, d, b + 32 + i))
    a("s_mov_b32 s38, 0xbfb8aa3b")
    for i in range(16):
        sv, fv, z = 32 + i, 48 + i, 80 + i
        bf16r(a, sv, sv)
        bf16r(a, fv, fv)
        a("v_mul_f32 v%d, s38, v%d" % (z, fv))
        a("v_exp_f32 v%d, v%d" % (z, z))
    for i in range(16):
        z = 80 + i
        a("v_add_f32 v%d, 1.0, v%d" % (z, z))
        a("v_rcp_f32 v%d, v%d" % (z, z))
    for i in range(16):
        sv, fv, z = 32 + i, 48 + i, 80 + i
        a("v_mul_f32 v%d, v%d, v%d" % (fv, fv, z))
        bf16r(a, fv, fv)
        a("v_mul_f32 v%d, v%d, v%d" % (sv, sv, fv))
        bf16r(a, sv, sv)
    a("s_waitcnt vmcnt(0)")
    for q in range(4):
        for hh in range(2):
            xr = 192 + 2 * q + hh
            a("v_lshlrev_b32 v96, 16, v%d" % xr)
            a("v_and_b32 v97, 0xffff0000, v%d" % xr)
            a("v_add_f32 v96, v96, v%d" % (32 + 4 * q + 2 * hh))
            a("v_add_f32 v97, v97, v%d" % (33 + 4 * q + 2 * hh))
            a("v_cvt_pk_bf16_f32 v%d, v96, v97" % (100 + 2 * q + hh))
    a("s_nop 1")
    for pr in range(2):
        b = 100 + 4 * pr
        a("v_permlane32_swap_b32 v%d, v%d" % (b, b + 2))
        a("v_permlane32_swap_b32 v%d, v%d" % (b + 1, b + 3))
        a("buffer_store_dwordx4 v[%d:%d], v4, s[24:27], 0 offen offset:%d" % (b, b + 3, pr * 32))
    a.label("k3_fin")
    stamp_exit(a, "k3")
    a.label("k3_done")
    a("s_endpgm")
    return kernel_desc(name, 220, 128)


def main():
    a = Asm()
    descs = []
    launches = []
    descs.append(gen_ln(a))
    launches.append("; @launch kernel=ln_kernel grid=(512,1,1) block=(256,1,1) lds=0")
    descs.append(gen_k1(a))
    launches.append("; @launch kernel=proj_kernel grid=(256,1,1) block=(512,1,1) lds=131072")
    descs.append(gen_attn(a))
    launches.append("; @launch kernel=attn_kernel grid=(256,1,1) block=(256,1,1) lds=131072")
    descs.append(gen_k3(a))
    launches.append("; @launch kernel=out_kernel grid=(256,1,1) block=(256,1,1) lds=%d" % max(131072, 32768 * K3_R))
    out = HEADER + "\n".join(launches) + "\n"
    out += '.amdgcn_target "amdgcn-amd-amdhsa--gfx950"\n.text\n'
    out += a.text()
    out += '.section .rodata,"a"\n'
    for d in descs:
        out += ".p2align 6\n" + d
    path = sys.argv[1] if len(sys.argv) > 1 else "cdna_kernels/%s.s" % NAME
    open(path, "w").write(out)


if __name__ == "__main__":
    main()
```
